```python
import torch

def _softmax(x, axis=-1):
    return torch.softmax(x, dim=axis)
def _gelu(x):
    return torch.nn.functional.gelu(x, approximate="tanh")
def _silu(x):
    return torch.nn.functional.silu(x)
def _sigmoid(x):
    return torch.sigmoid(x)
def _layernorm(x, axis=-1, eps=1e-5):
    m = x.mean(dim=axis, keepdim=True)
    v = x.var(dim=axis, keepdim=True, unbiased=False)
    return (x - m) / torch.sqrt(v + eps)
def _scatter_add(tgt, idx, src, axis=0):
    return tgt.clone().index_add_(axis, idx, src)
def _segment_sum(src, seg, n):
    out = torch.zeros((n,) + src.shape[1:], dtype=src.dtype)
    return out.index_add_(0, seg, src)
def _pad(x, pw):
    flat = tuple(v for pair in reversed(pw) for v in pair)
    return torch.nn.functional.pad(x, flat)

kernel_name = 'parallel_sum__spectral_gfnet__glu_gated_reglu__prompt'

def setup_inputs():

    _w = (lambda a: (lambda t: t.to(torch.bfloat16) if t.is_floating_point() else t)(torch.as_tensor(a)))
    def _A_setup():
        B, S, D = 1, 2048, 448
        Df = D // 2 + 1
        return {
            "x": _w((lambda *s: torch.randn(*s, dtype=torch.bfloat16) * 0.05)(B, S, D)),
            "w_r": _w((lambda *s: torch.randn(*s, dtype=torch.bfloat16) * 0.4)(S, Df) * 0.02),
            "w_i": _w((lambda *s: torch.randn(*s, dtype=torch.bfloat16) * 0.4)(S, Df) * 0.02),
        }
    _A_in = _A_setup()

    def _B_setup():
        B, S, D, F = 1, 2048, 448, 1792
        return {
            "x": _w((lambda *s: torch.randn(*s, dtype=torch.bfloat16) * 0.05)(B, S, D)),
            "W_gate": _w((lambda *s: torch.randn(*s, dtype=torch.bfloat16) * 0.2)(D, F) * (2.0 / D) ** 0.5),
            "W_up": _w((lambda *s: torch.randn(*s, dtype=torch.bfloat16) * 0.2)(D, F) * (2.0 / D) ** 0.5),
            "W_down": _w((lambda *s: torch.randn(*s, dtype=torch.bfloat16) * 0.2)(F, D) * (1.0 / F) ** 0.5),
        }
    _B_in = _B_setup()

    return {
        "A_x": _A_in["x"],
        "A_w_r": _A_in["w_r"],
        "A_w_i": _A_in["w_i"],
        "B_x": _B_in["x"],
        "B_W_gate": _B_in["W_gate"],
        "B_W_up": _B_in["W_up"],
        "B_W_down": _B_in["W_down"],
    }

def reference(A_x, A_w_r, A_w_i, B_x, B_W_gate, B_W_up, B_W_down):
    def _A_ref(x, w_r, w_i):
        B, S, D = x.shape
        X = (lambda x, axes=(-2,-1): torch.fft.rfft2(x.float(), dim=axes))(x, axes=(-2, -1))
        W = w_r + 1j * w_i
        X = X * W
        y = (lambda x, s, axes=(-2,-1): torch.fft.irfft2(x, s=s, dim=axes).to(torch.bfloat16))(X, (S, D), axes=(-2, -1))
        return y

    def _B_ref(x, W_gate, W_up, W_down):
        gate = torch.einsum("bsd,df->bsf", x, W_gate)
        up = torch.einsum("bsd,df->bsf", x, W_up)
        gate = gate * (lambda x, dt: x.to(dt))(gate > 0, gate.dtype)
        h = gate * up
        return torch.einsum("bsf,fd->bsd", h, W_down)

    x = A_x
    xn = _layernorm(x, axis=-1)
    return x + _A_ref(xn, A_w_r, A_w_i) + _B_ref(xn, B_W_gate, B_W_up, B_W_down)
```

```python
import re

class R:
    __slots__ = ("k", "n", "c", "neg")
    def __init__(self, k, n, c=1, neg=False):
        self.k, self.n, self.c, self.neg = k, n, c, neg
    def __str__(self):
        s = f"{self.k}{self.n}" if self.c == 1 else f"{self.k}[{self.n}:{self.n + self.c - 1}]"
        return ("-" if self.neg else "") + s
    def regs(self):
        return {(self.k, self.n + i) for i in range(self.c)}
    def __getitem__(self, i):
        if isinstance(i, slice):
            a = i.start or 0
            b = i.stop if i.stop is not None else self.c
            assert 0 <= a < b <= self.c, (a, b, self.c)
            return R(self.k, self.n + a, b - a)
        assert 0 <= i < self.c
        return R(self.k, self.n + i, 1)
    def __neg__(self):
        return R(self.k, self.n, self.c, not self.neg)

def V(n, c=1): return R("v", n, c)
def S(n, c=1): return R("s", n, c)
VCC = R("vcc", 0, 1); EXEC = R("exec", 0, 1); M0 = R("m0", 0, 1); SCC = R("scc", 0, 1)
for _r, _s in ((VCC, "vcc"), (EXEC, "exec"), (M0, "m0")):
    pass

def fmt(o):
    if isinstance(o, R):
        if o.k in ("vcc", "exec", "m0"): return o.k
        return str(o)
    if isinstance(o, float):
        if o in (0.5, 1.0, 2.0, 4.0, -0.5, -1.0, -2.0, -4.0): return repr(o)
        import struct
        return hex(struct.unpack("<I", struct.pack("<f", o))[0])
    if isinstance(o, int):
        return str(o) if -16 <= o <= 64 else hex(o & 0xffffffff)
    return str(o)

def rset(ops):
    s = set()
    for o in ops:
        if isinstance(o, R): s |= o.regs()
    return s

TRANS = ("v_exp_f32", "v_log_f32", "v_rcp_f32", "v_rsq_f32", "v_sqrt_f32", "v_sin_f32", "v_cos_f32")

class Ins:
    __slots__ = ("text", "cls", "w", "r", "rc", "states", "opt", "op", "passes", "wide_store")
    def __init__(self, text, cls, w=(), r=(), rc=None, states=1, op="", passes=0, wide_store=None):
        self.text, self.cls, self.w, self.r, self.rc = text, cls, set(w), set(r), rc
        self.states, self.opt, self.op, self.passes, self.wide_store = states, False, op, passes, wide_store

class Asm:
    def __init__(self):
        self.out = []
        self.hist = []
        self.vm = []
        self.lg = []
        self.opt = False
        self.nlabel = 0
        self.max_v = 0
        self.max_s = 0

    def raw(self, s): self.out.append(s)
    def comment(self, s): self.out.append("    ; " + s)
    def label(self, name, keep=False):
        self.out.append(name + ":")
        if not keep:
            self.hist = []
    def newlabel(self, p="L"):
        self.nlabel += 1
        return f"{p}_{self.nlabel}"

    def _need(self, ins):
        need = 0
        dist = 0
        for p in reversed(self.hist):
            if dist >= 20: break
            req = 0
            isv = lambda s: {x for x in s if x[0] == "v"}
            iss = lambda s: {x for x in s if x[0] in ("s", "vcc")}
            pw = p.w
            valuish = p.cls in ("valu", "trans", "dot")
            if valuish:
                if ins.cls == "mfma" and isv(pw) & (ins.r | (ins.rc or set())):
                    req = max(req, 3 if p.cls == "dot" else 2)
                if ins.op.startswith("v_permlane") and isv(pw) & ins.r: req = max(req, 2)
                if ins.op in ("v_readfirstlane_b32", "v_readlane_b32") and isv(pw) & ins.r: req = max(req, 1)
                if "dpp" in ins.text and isv(pw) & ins.r: req = max(req, 2)
                if iss(pw) & ins.r:
                    if ins.cls in ("valu", "trans", "dot"): req = max(req, 2)
                    if ins.cls in ("vmem",): req = max(req, 5)
                    if ins.cls in ("salu", "smem"): req = max(req, 4)
                    if ins.cls == "branch": req = max(req, 5)
                if ("exec", 0) in pw: req = max(req, 5)
            if p.cls == "trans" and ins.cls in ("valu", "dot", "mfma", "vmem", "ds") and pw & ins.r: req = max(req, 1 if ins.cls != "mfma" else 2)
            if p.cls == "dot":
                if pw & (ins.r | ins.w):
                    if ins.op == p.op and not (pw & (ins.r - (ins.rc or set()))): req = max(req, 0)
                    else: req = max(req, 3)
            if p.cls == "mfma":
                k = {2: (5, 4), 4: (8, 6), 8: (12, 10), 16: (20, 18)}[p.passes]
                if ins.cls == "mfma":
                    if pw & ins.r: req = max(req, k[0])
                    if ins.rc and pw & ins.rc and not (pw == ins.rc): req = max(req, k[1])
                    if pw & ins.w and not (ins.rc and pw == ins.rc): req = max(req, k[0])
                elif pw & (ins.r | ins.w): req = max(req, k[0])
                if p.rc and ins.cls in ("valu", "trans", "dot", "ds", "vmem") and p.rc & ins.w:
                    req = max(req, {2: 1, 4: 3, 8: 7, 16: 15}[p.passes])
            if p.cls == "salu" and ("m0", 0) in pw and ("m0", 0) in ins.r: req = max(req, 1)
            if p.wide_store and p.wide_store & ins.w: req = max(req, 2)
            if req > dist: need = max(need, req - dist)
            if not p.opt: dist += p.states
        return need

    def emit(self, ins):
        n = self._need(ins)
        while n > 0:
            k = min(n, 16)
            nop = Ins(f"s_nop {k - 1}", "nop", states=k)
            nop.opt = self.opt
            self.out.append(nop); self.hist.append(nop)
            n -= k
        ins.opt = self.opt
        self.out.append(ins); self.hist.append(ins)
        if len(self.hist) > 64: self.hist = self.hist[-40:]
        for k, i in ins.w | ins.r | (ins.rc or set()):
            if k == "v": self.max_v = max(self.max_v, i)
            if k == "s": self.max_s = max(self.max_s, i)
        return ins

    def valu(self, op, dst, *src, mods="", extra_r=(), extra_w=()):
        cls = "trans" if op in TRANS else ("dot" if op.startswith("v_dot") else "valu")
        r = rset(src) | rset(extra_r)
        rc = None
        if op.startswith("v_fmac") or op.startswith("v_dot2c"):
            r |= dst.regs(); rc = dst.regs()
        if op.startswith("v_permlane"):
            r |= dst.regs()
            w = dst.regs() | rset(src)
        else:
            w = rset([dst]) | rset(extra_w)
        t = f"{op} " + ", ".join(fmt(o) for o in (dst,) + src) + ((" " + mods) if mods else "")
        return self.emit(Ins(t, cls, w, r, rc=rc, op=op))
    def salu(self, op, dst, *src, scc=True):
        w = rset([dst]) if dst is not None else set()
        ops = ((dst,) if dst is not None else ()) + src
        t = f"{op} " + ", ".join(fmt(o) for o in ops)
        return self.emit(Ins(t, "salu", w, rset(src), op=op))
    def mfma(self, d, a, b, c=None, op="v_mfma_f32_32x32x16_bf16", passes=8):
        cc = c if c is not None else 0
        t = f"{op} {fmt(d)}, {fmt(a)}, {fmt(b)}, {fmt(cc)}"
        return self.emit(Ins(t, "mfma", d.regs(), a.regs() | b.regs(), rc=(c.regs() if c is not None else None), op=op, passes=passes))
    def sload(self, op, dst, base, off):
        return self.emit(Ins(f"{op} {fmt(dst)}, {fmt(base)}, {off}", "smem", dst.regs(), base.regs(), op=op))
    def bload(self, op, dst, voff, srd, soff=0, off=0, mods="", tag=None, lds=False):
        assert 0 <= off < 4096
        m = "offen" + (f" offset:{off}" if off else "") + (" " + mods if mods else "") + (" lds" if lds else "")
        if lds:
            t = f"{op} {fmt(voff)}, {fmt(srd)}, {fmt(soff)} {m}"
            ins = Ins(t, "vmem", (), rset([voff, srd, soff]) | {("m0", 0)}, op=op)
        else:
            t = f"{op} {fmt(dst)}, {fmt(voff)}, {fmt(srd)}, {fmt(soff)} {m}"
            ins = Ins(t, "vmem", dst.regs(), rset([voff, srd, soff]), op=op)
        self.emit(ins); self.vm.append(tag)
        assert len(self.vm) <= 63 or True
        return ins
    def bstore(self, op, data, voff, srd, soff=0, off=0, mods="", tag=None):
        assert 0 <= off < 4096
        m = "offen" + (f" offset:{off}" if off else "") + (" " + mods if mods else "")
        t = f"{op} {fmt(data)}, {fmt(voff)}, {fmt(srd)}, {fmt(soff)} {m}"
        ins = Ins(t, "vmem", (), rset([data, voff, srd, soff]), op=op, wide_store=(data.regs() if data.c >= 3 else None))
        self.emit(ins); self.vm.append(tag)
        return ins
    def dsr(self, op, dst, addr, off=0, tag=None):
        assert 0 <= off < 65536, off
        t = f"{op} {fmt(dst)}, {fmt(addr)}" + (f" offset:{off}" if off else "")
        self.emit(Ins(t, "ds", dst.regs(), addr.regs(), op=op)); self.lg.append(tag)
    def dsw(self, op, addr, data, off=0, tag=None):
        assert 0 <= off < 65536, off
        t = f"{op} {fmt(addr)}, {fmt(data)}" + (f" offset:{off}" if off else "")
        self.emit(Ins(t, "ds", (), addr.regs() | data.regs(), op=op)); self.lg.append(tag)
    def wait(self, vm=None, lg=None):
        parts = []
        if vm is not None:
            if vm == "all": n = 0
            else:
                idx = [i for i, t in enumerate(self.vm) if t == vm]
                n = len(self.vm) - 1 - idx[-1] if idx else None
            if n is not None:
                n = min(n, 63)
                parts.append(f"vmcnt({n})"); self.vm = self.vm[len(self.vm) - n:] if n else []
        if lg is not None:
            if lg == "all": n = 0
            else:
                idx = [i for i, t in enumerate(self.lg) if t == lg]
                n = len(self.lg) - 1 - idx[-1] if idx else None
            if n is not None:
                n = min(n, 15)
                parts.append(f"lgkmcnt({n})"); self.lg = self.lg[len(self.lg) - n:] if n else []
        if parts:
            self.emit(Ins("s_waitcnt " + " ".join(parts), "wait"))
    def misc(self, text, cls="misc", r=(), w=()):
        return self.emit(Ins(text, cls, rset(w), rset(r), op=text.split()[0]))
    def barrier(self): self.misc("s_barrier")
    def branch(self, op, label):
        r = ()
        if "vcc" in op: r = (VCC,)
        return self.emit(Ins(f"{op} {label}", "branch", (), rset(r), op=op))
    def nop(self, n):
        self.emit(Ins(f"s_nop {n - 1}", "nop", states=n))
    def text(self):
        return "\n".join((o if isinstance(o, str) else "    " + o.text) for o in self.out) + "\n"
```

```python
import sys, math
import numpy as np
from dsl import *

NAME = "parallel_sum__spectral_gfnet__glu_gated_reglu__prompt"
WS_H   = 0
WS_X1T = 0x800000
WS_WT  = 0xA00000
WS_YF  = 0xC00000
WS_SIZE = 0x1000000
SRD3 = 0x00020000

def bf16bits(x):
    u = np.array([x], dtype=np.float32).view(np.uint32)[0]
    return int(((int(u) + 0x7FFF + ((int(u) >> 16) & 1)) >> 16) & 0xFFFF)

def srd(a, base, ptr, size, add=None):
    if add:
        a.salu("s_add_u32", S(base), ptr[0], add)
        a.salu("s_addc_u32", S(base + 1), ptr[1], 0)
    else:
        a.salu("s_mov_b32", S(base), ptr[0])
        a.salu("s_mov_b32", S(base + 1), ptr[1])
    a.salu("s_mov_b32", S(base + 2), size)
    a.salu("s_mov_b32", S(base + 3), SRD3)

def getpc(a, dst, sym):
    a.misc(f"s_getpc_b64 {dst}", "salu", w=[dst])
    a.misc(f"s_add_u32 {dst[0]}, {dst[0]}, {sym}@rel32@lo+4", "salu", r=[dst], w=[dst])
    a.misc(f"s_addc_u32 {dst[1]}, {dst[1]}, {sym}@rel32@hi+12", "salu", r=[dst], w=[dst])

def bf16r(a, x, tmp):
    a.valu("v_cvt_pk_bf16_f32", tmp, x, x)
    a.valu("v_lshlrev_b32", x, 16, tmp)

def half_sum(a, x, tmp):
    a.valu("v_mov_b32", tmp, x)
    a.valu("v_permlane32_swap_b32", x, tmp)
    a.valu("v_add_f32", x, x, tmp)

K1_CB = 114688
K1_ST = K1_CB + 512
K1_LDS = K1_ST + 2048

def gen_k1(a):
    sW, sMT, sNT, sSTR, sCOL, sT0, sT1, sN2, sSO = S(3), S(16), S(17), S(18), S(19), S(20), S(21), S(22), S(23)
    pX, pWR, pWI, pWS, pWG, pWU = S(4, 2), S(6, 2), S(8, 2), S(10, 2), S(12, 2), S(14, 2)
    rX, rB0, rB1, rWR, rWI, rWS = S(24, 4), S(28, 4), S(32, 4), S(36, 4), S(40, 4), S(44, 4)
    pT = S(48, 2); sONE = S(52); sM0 = S(53); sCH = S(54); sT2 = S(55); sT3 = S(56)
    sJ = [S(57), S(58), S(59)]
    lane, vX, vB = V(1), V(2), V(3)
    aT = [V(4), V(5), V(6), V(7)]
    vSUM, vSQ, vCG, vCU = V(8), V(9), V(10), V(11)
    t0, t1, t2, t3 = V(12), V(13), V(14), V(15)
    XF = [V(16 + 4 * t, 4) for t in range(28)]
    ACC = [V(128 + 16 * s, 16) for s in range(4)]
    BF = [[V(192 + 16 * b + 4 * s, 4) for s in range(4)] for b in range(2)]
    WTMP = V(224, 8); vWO, vWD = V(232), V(233)
    vM, vR, vR2, vMR = V(234), V(235), V(236), V(237)
    vST = V(238); vCA = V(239)

    a.raw(".p2align 8\nk1_kernel:")
    a.salu("s_cmp_ge_u32", None, S(2), 256)
    a.branch("s_cbranch_scc1", "K1_END")
    a.sload("s_load_dwordx4", S(4, 4), S(0, 2), 0)
    a.sload("s_load_dwordx2", pWI, S(0, 2), 16)
    a.sload("s_load_dwordx4", S(12, 4), S(0, 2), 32)
    a.sload("s_load_dwordx2", pWS, S(0, 2), 72)
    a.valu("v_and_b32", lane, 63, V(0))
    a.valu("v_lshrrev_b32", t0, 6, V(0))
    a.valu("v_readfirstlane_b32", sW, t0)
    a.salu("s_and_b32", sT0, S(2), 7)
    a.salu("s_lshr_b32", sT1, S(2), 3)
    a.salu("s_and_b32", sMT, sT0, 1)
    a.salu("s_lshl_b32", sMT, sMT, 2)
    a.salu("s_and_b32", sT2, sT1, 3)
    a.salu("s_add_u32", sMT, sMT, sT2)
    a.salu("s_lshr_b32", sNT, sT0, 1)
    a.salu("s_lshl_b32", sNT, sNT, 3)
    a.salu("s_lshr_b32", sT2, sT1, 2)
    a.salu("s_add_u32", sNT, sNT, sT2)
    a.salu("s_lshl_b32", sN2, sMT, 3)
    a.salu("s_add_u32", sN2, sN2, sW)
    a.salu("s_mov_b32", sONE, 0x3f803f80)
    a.valu("v_and_b32", t0, 31, lane)
    a.valu("v_mul_u32_u24", t0, 57344, t0)
    a.valu("v_lshrrev_b32", t1, 5, lane)
    a.valu("v_lshl_add_u32", t0, t1, 4, t0)
    a.salu("s_mul_i32", sT0, sN2, 896)
    a.valu("v_add_u32", vX, sT0, t0)
    getpc(a, pT, "TAB_F")
    a.misc("s_waitcnt lgkmcnt(0)", "wait")
    srd(a, 24, pX, 2048 * 896)
    srd(a, 36, pWR, 2048 * 450)
    srd(a, 40, pWI, 2048 * 450)
    srd(a, 44, pWS, WS_SIZE)
    a.salu("s_cmp_ge_u32", None, sNT, 28)
    a.branch("s_cbranch_scc1", "K1_SETD")
    a.salu("s_movk_i32", sSTR, 3584)
    a.salu("s_lshl_b32", sCOL, sNT, 7)
    srd(a, 28, pWG, 448 * 3584)
    srd(a, 32, pWU, 448 * 3584)
    a.branch("s_branch", "K1_SETE")
    a.label("K1_SETD")
    a.salu("s_movk_i32", sSTR, 128)
    a.salu("s_mov_b32", sCOL, 0)
    a.salu("s_sub_u32", sT0, sNT, 28)
    a.salu("s_mul_i32", sT0, sT0, 114688)
    a.salu("s_add_u32", pT[0], pT[0], sT0)
    a.salu("s_addc_u32", pT[1], pT[1], 0)
    srd(a, 28, pT, 57344)
    srd(a, 32, pT, 57344, add=57344)
    a.label("K1_SETE")
    a.valu("v_lshrrev_b32", t0, 3, lane)
    a.salu("s_lshl_b32", sT0, sW, 3)
    a.valu("v_add_u32", t1, sT0, t0)
    a.valu("v_mul_lo_u32", t1, t1, sSTR)
    a.valu("v_and_b32", t2, 7, lane)
    a.valu("v_lshlrev_b32", t0, 1, t0)
    a.valu("v_and_b32", t0, 4, t0)
    a.valu("v_xor_b32", t2, t2, t0)
    a.valu("v_lshl_add_u32", t1, t2, 4, t1)
    a.valu("v_add_u32", vB, sCOL, t1)
    a.salu("s_lshl_b32", sCH, sSTR, 6)
    a.salu("s_mov_b32", sSO, 0)
    a.salu("s_lshl_b32", sM0, sW, 10)
    for c in range(7):
        a.salu("s_mov_b32", M0, sM0)
        a.bload("buffer_load_dwordx4", None, vB, rB0, sSO, lds=True, tag=f"c{c}")
        a.salu("s_add_u32", sT0, sM0, 57344)
        a.salu("s_mov_b32", M0, sT0)
        a.bload("buffer_load_dwordx4", None, vB, rB1, sSO, lds=True, tag=f"c{c}")
        for t in range(4 * c, 4 * c + 4):
            a.bload("buffer_load_dwordx4", XF[t], vX, rX, 0, off=32 * t, tag=f"c{c}")
        if c < 6:
            a.salu("s_add_u32", sSO, sSO, sCH)
            a.salu("s_add_u32", sM0, sM0, 8192)
    a.salu("s_lshr_b32", sT0, sW, 2)
    a.salu("s_lshl_b32", sT1, S(2), 1)
    a.salu("s_add_u32", sT0, sT0, sT1)
    a.salu("s_and_b32", sT1, sT0, 31)
    a.salu("s_lshr_b32", sT2, sT0, 5)
    a.salu("s_lshl_b32", sT3, sT2, 7)
    a.salu("s_add_u32", sT3, sT3, sT1)
    a.salu("s_mul_i32", sT3, sT3, 450)
    a.valu("v_and_b32", t0, 255, V(0))
    a.valu("v_lshl_add_u32", t1, t0, 1, sT3)
    a.valu("v_mov_b32", t2, 0x40000000)
    a.valu("v_cmp_gt_u32", VCC, 225, t0)
    a.valu("v_cndmask_b32", vWO, t2, t1, VCC)
    for j in range(3): a.salu("s_mov_b32", sJ[j], 14400 * (j + 1))
    for j in range(4):
        a.bload("buffer_load_ushort", WTMP[j], vWO, rWR, (sJ[j - 1] if j else 0), tag="wt")
    for j in range(4):
        a.bload("buffer_load_ushort", WTMP[4 + j], vWO, rWI, (sJ[j - 1] if j else 0), tag="wt")
    a.salu("s_lshr_b32", sT3, sT2, 1)
    a.salu("s_lshl_b32", sT3, sT3, 10)
    a.salu("s_and_b32", sT2, sT2, 1)
    a.salu("s_lshl_b32", sT2, sT2, 5)
    a.salu("s_add_u32", sT2, sT2, sT1)
    a.salu("s_lshl_b32", sT2, sT2, 4)
    a.salu("s_add_u32", sT3, sT3, sT2)
    a.salu("s_add_u32", sT3, sT3, WS_WT)
    a.valu("v_lshl_add_u32", vWD, t0, 13, sT3)
    a.valu("v_lshrrev_b32", t0, 5, lane)
    a.valu("v_bfe_u32", t1, lane, 2, 2)
    a.valu("v_lshl_add_u32", t0, t0, 3, t1)
    a.valu("v_lshlrev_b32", t0, 7, t0)
    a.valu("v_bfe_u32", t2, lane, 4, 1)
    a.valu("v_lshlrev_b32", t2, 5, t2)
    a.valu("v_and_b32", t3, 3, lane)
    a.valu("v_lshl_add_u32", t2, t3, 3, t2)
    a.valu("v_lshrrev_b32", t1, 1, t1)
    a.salu("s_and_b32", sT0, sW, 1)
    a.valu("v_xor_b32", t1, sT0, t1)
    a.valu("v_lshl_add_u32", t2, t1, 6, t2)
    a.valu("v_add_u32", aT[0], t0, t2)
    a.valu("v_xor_b32", aT[1], 64, aT[0])
    a.valu("v_add_u32", aT[2], 57344, aT[0])
    a.valu("v_add_u32", aT[3], 57344, aT[1])
    a.valu("v_and_b32", t0, 127, V(0))
    a.valu("v_lshlrev_b32", t0, 2, t0)
    a.valu("v_add_u32", t0, K1_CB, t0)
    a.valu("v_mov_b32", t1, 0)
    a.dsw("ds_write_b32", t0, t1, tag="z")
    for x in (vSUM, vSQ, vCG, vCU): a.valu("v_mov_b32", x, 0)
    a.salu("s_lshr_b32", sT0, sW, 1)
    a.salu("s_cmp_eq_u32", None, sT0, 1)
    a.salu("s_cselect_b64", VCC, -1, 0)
    a.salu("s_cmp_ge_u32", None, sNT, 28)
    a.branch("s_cbranch_scc1", "K1_DFT")
    vm0, lg0 = list(a.vm), list(a.lg)

    def reads(t):
        for s in range(4):
            for q in range(2):
                a.dsr("ds_read_b64_tr_b16", BF[t & 1][s][2 * q:2 * q + 2], aT[s], off=(16 * t + 4 * q) * 128, tag=f"r{t}")

    def main(kind):
        a.salu("s_cmp_lg_u32", None, sT0, 0)
        a.wait(vm="c0"); a.barrier(); reads(0)
        for t in range(28):
            if t + 1 < 28:
                if (t + 1) % 4 == 0:
                    a.wait(vm=f"c{(t + 1) // 4}"); a.barrier()
                reads(t + 1)
            a.wait(lg=f"r{t}")
            for s in range(4):
                c = ACC[s] if t else None
                if kind == "ffn": a.mfma(ACC[s], BF[t & 1][s], XF[t], c)
                else: a.mfma(ACC[s], XF[t], BF[t & 1][s], c)
                a.valu("v_dot2c_f32_bf16", vSUM, sONE, XF[t][s])
                a.valu("v_dot2c_f32_bf16", vSQ, XF[t][s], XF[t][s])
            L = a.newlabel("K1S")
            a.branch("s_cbranch_scc1" if t % 2 == 0 else "s_cbranch_vccz", L)
            a.opt = True
            for i in range(4):
                a.valu("v_dot2c_f32_bf16", vCG, sONE, BF[t & 1][0][i])
                a.valu("v_dot2c_f32_bf16", vCU, sONE, BF[t & 1][2][i])
            a.opt = False
            a.label(L, keep=True)
        L = a.newlabel("K1C")
        a.salu("s_cmp_ge_u32", None, sW, 4)
        a.branch("s_cbranch_scc1", L)
        a.opt = True
        half_sum(a, vCG, t0); half_sum(a, vCU, t0)
        a.salu("s_and_b32", sT1, sW, 1)
        a.salu("s_lshl_b32", sT1, sT1, 7)
        a.salu("s_add_u32", sT1, sT1, K1_CB)
        a.valu("v_lshl_add_u32", t1, lane, 2, sT1)
        a.misc("s_mov_b32 exec_hi, 0", "salu", w=[EXEC])
        a.dsw("ds_add_f32", t1, vCG)
        a.dsw("ds_add_f32", t1, vCU, off=256)
        a.misc("s_mov_b32 exec_hi, -1", "salu", w=[EXEC])
        a.opt = False
        a.label(L, keep=True)
        a.wait(vm="wt")
        for j in range(4):
            a.valu("v_lshl_or_b32", WTMP[j], WTMP[2 * j + 1], 16, WTMP[2 * j])
        a.bstore("buffer_store_dwordx4", WTMP[0:4], vWD, rWS, 0)
        half_sum(a, vSUM, t0); half_sum(a, vSQ, t0)
        a.valu("v_mul_f32", vM, 1.0 / 448, vSUM)
        a.valu("v_mul_f32", t1, 1.0 / 448, vSQ)
        a.valu("v_fma_f32", t1, -vM, vM, t1)
        a.valu("v_max_f32", t1, 0, t1)
        bf16r(a, vM, t0); bf16r(a, t1, t0)
        a.valu("v_add_f32", t1, 1e-5, t1)
        bf16r(a, t1, t0)
        a.valu("v_sqrt_f32", t1, t1)
        bf16r(a, t1, t0)
        a.valu("v_rcp_f32", vR, t1)
        a.wait(lg="all"); a.barrier()

    main("ffn")
    a.valu("v_mul_f32", vR2, vR, vR)
    a.valu("v_lshrrev_b32", t0, 5, lane)
    a.valu("v_lshlrev_b32", t0, 4, t0)
    a.salu("s_and_b32", sT1, sW, 1)
    a.salu("s_lshl_b32", sT1, sT1, 7)
    a.salu("s_add_u32", sT1, sT1, K1_CB)
    a.valu("v_add_u32", vCA, sT1, t0)
    a.valu("v_xor_b32", t0, 128, vCA)
    CV = [V(16 + 16 * s, 16) for s in range(4)]
    for p in range(2):
        for s in (p, p + 2):
            for g in range(4):
                a.dsr("ds_read_b128", CV[s][4 * g:4 * g + 4], (vCA if p == 0 else t0), off=(s >> 1) * 256 + g * 32, tag=f"cv{p}")
    a.salu("s_mul_i32", sT1, sN2, 112)
    a.salu("s_lshl_b32", sT2, sNT, 2)
    a.salu("s_add_u32", sT1, sT1, sT2)
    a.salu("s_and_b32", sT2, sW, 1)
    a.salu("s_lshl_b32", sT2, sT2, 1)
    a.salu("s_add_u32", sT1, sT1, sT2)
    a.salu("s_lshl_b32", sT1, sT1, 10)
    a.salu("s_xor_b32", sT2, sT1, 2048)
    a.valu("v_lshlrev_b32", vST, 4, lane)
    PK = V(96, 16)
    for p in range(2):
        a.wait(lg=f"cv{p}")
        G, U = ACC[p], ACC[p + 2]
        for r in range(16):
            a.valu("v_fma_f32", G[r], -vM, CV[p][r], G[r])
            a.valu("v_fma_f32", U[r], -vM, CV[p + 2][r], U[r])
            a.valu("v_max_f32", G[r], 0, G[r])
            a.valu("v_mul_f32", U[r], vR2, U[r])
            a.valu("v_mul_f32", G[r], G[r], U[r])
        pk = PK[8 * p:8 * p + 8]
        for i in range(8):
            a.valu("v_cvt_pk_bf16_f32", pk[i], G[2 * i], G[2 * i + 1])
        for q in range(2):
            a.valu("v_permlane32_swap_b32", pk[4 * q], pk[4 * q + 2])
            a.valu("v_permlane32_swap_b32", pk[4 * q + 1], pk[4 * q + 3])
            a.bstore("buffer_store_dwordx4", pk[4 * q:4 * q + 4], vST, rWS, (sT1 if p == 0 else sT2), off=q * 1024)
    a.misc("s_endpgm")

    a.label("K1_DFT")
    a.vm, a.lg = list(vm0), list(lg0)
    main("dft")
    a.valu("v_mul_f32", vMR, vM, vR)
    a.salu("s_lshl_b32", sT1, sW, 8)
    a.salu("s_add_u32", sT1, sT1, K1_ST)
    a.valu("v_and_b32", t0, 31, lane)
    a.valu("v_lshl_add_u32", t1, t0, 2, sT1)
    a.dsw("ds_write_b32", t1, vR)
    a.dsw("ds_write_b32", t1, vMR, off=128)
    a.valu("v_lshrrev_b32", t2, 5, lane)
    a.valu("v_lshl_add_u32", t2, t2, 4, sT1)
    RV, MV = V(16, 16), V(32, 16)
    CL = V(48, 4)
    a.salu("s_and_b32", sT2, sW, 1)
    a.salu("s_lshl_b32", sT2, sT2, 7)
    a.salu("s_add_u32", sT2, sT2, K1_CB)
    a.valu("v_lshl_add_u32", vCA, t0, 2, sT2)
    a.valu("v_xor_b32", t3, 128, vCA)
    for s in range(4):
        a.dsr("ds_read_b32", CL[s], (vCA if s % 2 == 0 else t3), off=(s >> 1) * 256, tag="cl")
    for g in range(4):
        a.dsr("ds_read_b128", RV[4 * g:4 * g + 4], t2, off=32 * g, tag="st")
        a.dsr("ds_read_b128", MV[4 * g:4 * g + 4], t2, off=128 + 32 * g, tag="st")
    a.salu("s_sub_u32", sT1, sNT, 28)
    a.salu("s_lshl_b32", sT1, sT1, 1)
    a.salu("s_and_b32", sT2, sW, 1)
    a.salu("s_add_u32", sT1, sT1, sT2)
    a.salu("s_lshl_b32", sT1, sT1, 18)
    a.salu("s_lshl_b32", sT2, sN2, 6)
    a.salu("s_add_u32", sT1, sT1, sT2)
    a.salu("s_add_u32", sT1, sT1, WS_X1T)
    a.salu("s_xor_b32", sT2, sT1, 1 << 18)
    a.salu("s_add_u32", sT3, sT1, 4096)
    a.salu("s_add_u32", sT0, sT2, 4096)
    so = [sT1, sT2, sT3, sT0]
    a.valu("v_lshlrev_b32", vST, 13, t0)
    a.valu("v_lshrrev_b32", t1, 5, lane)
    a.valu("v_lshl_add_u32", vST, t1, 4, vST)
    a.wait(lg="all")
    PK = V(64, 32)
    for s in range(4):
        A_ = ACC[s]
        for r in range(16):
            a.valu("v_mul_f32", A_[r], A_[r], RV[r])
            a.valu("v_fma_f32", A_[r], -MV[r], CL[s], A_[r])
        pk = PK[8 * s:8 * s + 8]
        for i in range(8):
            a.valu("v_cvt_pk_bf16_f32", pk[i], A_[2 * i], A_[2 * i + 1])
        for q in range(2):
            a.valu("v_permlane32_swap_b32", pk[4 * q], pk[4 * q + 2])
            a.valu("v_permlane32_swap_b32", pk[4 * q + 1], pk[4 * q + 3])
            a.bstore("buffer_store_dwordx4", pk[4 * q:4 * q + 4], vST, rWS, so[s], off=q * 32)
    a.label("K1_END")
    a.misc("s_endpgm")

C_F32 = 0; C_F64 = 6144; C_TW = 22528; C_ROWS = 40960; C_RS = 4160
K2_LDS = 163840

def gen_colfft(a, flags):
    sW, sG, sKD, sT0, sT1, sT2 = S(3), S(2), S(16), S(17), S(18), S(19)
    pWS, pDBG, pT = S(4, 2), S(6, 2), S(8, 2)
    rWS, rCT, rDBG = S(24, 4), S(28, 4), S(32, 4)
    lane = V(1)
    vL16, vXO, vWA, vT0, vT1, vT2, vT3 = V(2), V(3), [V(4), V(5), V(6), V(7)], V(8), V(9), V(10), V(11)
    vRA = [V(12), V(13)]; vOA = V(14); vO2 = V(15)
    XIN = lambda c, b, u: V(16 + 4 * (c * 4 + b * 2 + u), 4)
    WV = lambda b, g: V(48 + 4 * (b * 4 + g), 4)
    AR = [V(80, 16), V(96, 16)]; AI = [V(112, 16), V(128, 16)]
    P0, P1, P2 = V(144, 16), V(160, 16), V(176, 16)
    def F64(c, rb, ks):
        i = (c * 2 + rb) * 4 + ks
        return V(16 + 4 * i, 4) if c == 0 else V(192 + 4 * (i - 8), 4)
    TMP = V(224, 32)
    F32 = lambda c, u: TMP[4 * (c * 2 + u):4 * (c * 2 + u) + 4]
    TWr = lambda g: TMP[8 * g:8 * g + 4]
    TWi = lambda g: TMP[8 * g + 4:8 * g + 8]

    a.label("K2_COL")
    a.salu("s_cmp_ge_u32", None, sG, 29)
    a.branch("s_cbranch_scc1", "K2_END")
    a.sload("s_load_dwordx4", S(4, 4), S(0, 2), 64)
    pDBG, pWS = S(4, 2), S(6, 2)
    a.valu("v_and_b32", lane, 63, V(0))
    a.valu("v_lshrrev_b32", vT0, 6, V(0))
    a.valu("v_readfirstlane_b32", sW, vT0)
    a.valu("v_lshlrev_b32", vL16, 4, lane)
    getpc(a, pT, "TAB_C")
    srd(a, 28, pT, 40960)
    a.salu("s_lshl_b32", sKD, sG, 3)
    a.salu("s_add_u32", sKD, sKD, sW)
    a.salu("s_lshl_b32", sT0, sW, 10)
    for i in range(5):
        a.salu("s_mov_b32", M0, sT0)
        a.bload("buffer_load_dwordx4", None, vL16, rCT, sT0, lds=True, tag="ct")
        if i < 4: a.salu("s_add_u32", sT0, sT0, 8192)
    a.valu("v_and_b32", vT0, 31, lane)
    a.valu("v_lshlrev_b32", vXO, 6, vT0)
    a.valu("v_lshrrev_b32", vT1, 5, lane)
    a.valu("v_lshl_add_u32", vXO, vT1, 4, vXO)
    a.misc("s_waitcnt lgkmcnt(0)", "wait")
    srd(a, 24, pWS, WS_SIZE)
    srd(a, 32, pDBG, 256)
    a.salu("s_lshl_b32", sT0, sKD, 13)
    a.salu("s_add_u32", sT1, sT0, WS_X1T)
    a.salu("s_add_u32", sT2, sT1, 4096)
    for c in range(2):
        for b in range(2):
            for u in range(2):
                a.bload("buffer_load_dwordx4", XIN(c, b, u), vXO, rWS, (sT1, sT2)[c], off=b * 2048 + u * 32, tag="x")
    a.salu("s_add_u32", sT1, sT0, WS_WT)
    a.salu("s_add_u32", sT2, sT1, 4096)
    for b in range(2):
        for g in range(4):
            a.bload("buffer_load_dwordx4", WV(b, g), vL16, rWS, (sT1, sT2)[b], off=g * 1024, tag="w")
    a.salu("s_mul_i32", sT0, sW, C_RS)
    a.salu("s_add_u32", sT0, sT0, C_ROWS)
    a.valu("v_bfe_u32", vT2, lane, 1, 3)
    a.valu("v_xor_b32", vT2, vT2, vT1)
    a.valu("v_lshlrev_b32", vT2, 3, vT2)
    a.valu("v_lshl_add_u32", vT2, vT0, 6, vT2)
    a.valu("v_add_u32", vWA[0], sT0, vT2)
    for g in range(1, 4): a.valu("v_xor_b32", vWA[g], 16 * g, vWA[0])
    a.valu("v_bfe_u32", vT2, lane, 2, 2)
    a.valu("v_lshl_add_u32", vT3, vT1, 3, vT2)
    a.valu("v_lshlrev_b32", vRA[0], 6, vT3)
    a.valu("v_lshrrev_b32", vT3, 1, vT3)
    a.valu("v_bfe_u32", vT2, lane, 4, 1)
    a.valu("v_lshlrev_b32", vT2, 2, vT2)
    a.valu("v_and_b32", vT0, 3, lane)
    a.valu("v_add_u32", vT2, vT2, vT0)
    a.valu("v_xor_b32", vT3, vT3, vT2)
    a.valu("v_lshl_add_u32", vRA[0], vT3, 3, vRA[0])
    a.valu("v_add_u32", vRA[0], sT0, vRA[0])
    a.valu("v_xor_b32", vRA[1], 16, vRA[0])
    a.valu("v_add_u32", vRA[1], 256, vRA[1])
    a.valu("v_bfe_u32", vT0, lane, 2, 2)
    a.valu("v_lshl_add_u32", vT0, vT1, 3, vT0)
    a.valu("v_mul_u32_u24", vT0, C_RS, vT0)
    a.salu("s_and_b32", sT1, sW, 1)
    a.salu("s_lshl_b32", sT1, sT1, 2)
    a.valu("v_xor_b32", vT2, sT1, vT2)
    a.valu("v_lshl_add_u32", vT0, vT2, 3, vT0)
    a.salu("s_lshl_b32", sT1, sW, 9)
    a.salu("s_add_u32", sT1, sT1, C_ROWS)
    a.valu("v_add_u32", vOA, sT1, vT0)

    a.wait(vm="ct"); a.barrier()
    for c in range(3):
        for u in range(2):
            a.dsr("ds_read_b128", F32(c, u), vL16, off=C_F32 + (c * 2 + u) * 1024, tag="f32")
    for rb in range(2):
        for ks in range(4):
            a.dsr("ds_read_b128", F64(1, rb, ks), vL16, off=C_F64 + ((2 + rb) * 4 + ks) * 1024, tag="f64i")
    a.wait(vm="x", lg="f32")
    for b in range(2):
        for u in range(2):
            a.mfma(AR[b], XIN(0, b, u), F32(0, u), AR[b] if u else None)
            a.mfma(AI[b], XIN(0, b, u), F32(1, u), AI[b] if u else None)
        for u in range(2):
            a.mfma(AR[b], XIN(1, b, u), F32(2, u), AR[b])
            a.mfma(AI[b], XIN(1, b, u), F32(0, u), AI[b])
    a.wait(lg="all")

    def tw_reads(b, g):
        a.dsr("ds_read_b128", TWr(g), vL16, off=C_TW + ((b * 4 + g) * 2) * 1024, tag=f"tw{b}{g}")
        a.dsr("ds_read_b128", TWi(g), vL16, off=C_TW + ((b * 4 + g) * 2 + 1) * 1024, tag=f"tw{b}{g}")

    def twiddle(conj, sink, extra=None):
        for g in range(4): tw_reads(0, g)
        if extra: extra()
        for b in range(2):
            for g in range(4):
                a.wait(lg=f"tw{b}{g}")
                for e in range(4):
                    r = 4 * g + e
                    tr, ti = TWr(g)[e], TWi(g)[e]
                    a.valu("v_mul_f32", vT0, AR[b][r], ti)
                    a.valu("v_mul_f32", AR[b][r], AR[b][r], tr)
                    if not conj:
                        a.valu("v_fma_f32", AR[b][r], -AI[b][r], ti, AR[b][r])
                        a.valu("v_fma_f32", AI[b][r], AI[b][r], tr, vT0)
                    else:
                        a.valu("v_fma_f32", AR[b][r], AI[b][r], ti, AR[b][r])
                        a.valu("v_fma_f32", AI[b][r], AI[b][r], tr, -vT0)
                if b == 0: tw_reads(1, g)
                sink(b, g)

    def pack3(negsrc):
        def sink(b, g):
            for j in range(2):
                i = 8 * b + 2 * g + j; r = 4 * g + 2 * j
                a.valu("v_cvt_pk_bf16_f32", P0[i], AR[b][r], AR[b][r + 1])
                a.valu("v_cvt_pk_bf16_f32", P1[i], AI[b][r], AI[b][r + 1])
                N = negsrc[b]
                a.valu("v_cvt_pk_bf16_f32", P2[i], -N[r], -N[r + 1])
        return sink

    def f64lo():
        for rb in range(2):
            for ks in range(4):
                if rb * 4 + ks < 7:
                    a.dsr("ds_read_b128", F64(0, rb, ks), vL16, off=C_F64 + (rb * 4 + ks) * 1024, tag="f64r")
    twiddle(False, pack3(AI), extra=f64lo)
    a.dsr("ds_read_b128", F64(0, 1, 3), vL16, off=C_F64 + 7 * 1024, tag="f64r")
    a.wait(lg="all")
    PK = lambda P, ks: P[4 * ks:4 * ks + 4]
    for rb in range(2):
        for ks in range(4):
            a.mfma(AR[rb], F64(0, rb, ks), PK(P0, ks), AR[rb] if ks else None)
            a.mfma(AI[rb], F64(1, rb, ks), PK(P0, ks), AI[rb] if ks else None)
            a.mfma(AR[rb], F64(1, rb, ks), PK(P2, ks), AR[rb])
            a.mfma(AI[rb], F64(0, rb, ks), PK(P1, ks), AI[rb])
    a.wait(vm="w")
    sinkZ = pack3(AR)
    for b in range(2):
        for g in range(4):
            for e in range(4):
                r = 4 * g + e
                wr_, wi_ = WV(b, g)[e >> 1], WV(b, g)[2 + (e >> 1)]
                if e & 1:
                    a.valu("v_and_b32", vT1, 0xffff0000, wr_); a.valu("v_and_b32", vT2, 0xffff0000, wi_)
                else:
                    a.valu("v_lshlrev_b32", vT1, 16, wr_); a.valu("v_lshlrev_b32", vT2, 16, wi_)
                a.valu("v_mul_f32", vT0, AR[b][r], vT2)
                a.valu("v_mul_f32", AR[b][r], AR[b][r], vT1)
                a.valu("v_fma_f32", AR[b][r], -AI[b][r], vT2, AR[b][r])
                a.valu("v_fma_f32", AI[b][r], AI[b][r], vT1, vT0)
        for g in range(4): sinkZ(b, g)
    for rb in range(2):
        for ks in range(4):
            a.mfma(AR[rb], F64(0, rb, ks), PK(P0, ks), AR[rb] if ks else None)
            a.mfma(AI[rb], F64(0, rb, ks), PK(P1, ks), AI[rb] if ks else None)
            a.mfma(AR[rb], F64(1, rb, ks), PK(P1, ks), AR[rb])
            a.mfma(AI[rb], F64(1, rb, ks), PK(P2, ks), AI[rb])
    def sinkL(b, g):
        for (P, A_, c) in ((P0, AR, 0), (P1, AI, 1)):
            i = 8 * b + 2 * g
            a.valu("v_cvt_pk_bf16_f32", P[i], A_[b][4 * g], A_[b][4 * g + 1])
            a.valu("v_cvt_pk_bf16_f32", P[i + 1], A_[b][4 * g + 2], A_[b][4 * g + 3])
            a.dsw("ds_write_b64", vWA[g], P[i:i + 2], off=c * 8 * C_RS + b * 2048)
    twiddle(True, sinkL)
    a.wait(lg="all")
    BO = lambda c, cb, u: V(16 + 4 * (c * 4 + cb * 2 + u), 4)
    for c in range(3):
        for u in range(2):
            a.dsr("ds_read_b128", F32(c, u), vL16, off=C_F32 + (c * 2 + u) * 1024, tag="f32")
    for cb in range(2):
        for c in range(2):
            for u in range(2):
                for q in range(2):
                    a.dsr("ds_read_b64_tr_b16", BO(c, cb, u)[2 * q:2 * q + 2], vRA[q], off=c * 8 * C_RS + cb * 2048 + u * 1024, tag=f"bo{cb}")
        a.wait(lg=f"bo{cb}")
    for cb in range(2):
        for u in range(2):
            a.mfma(AR[cb], F32(0, u), BO(0, cb, u), AR[cb] if u else None)
            a.mfma(AI[cb], F32(0, u), BO(1, cb, u), AI[cb] if u else None)
        for u in range(2):
            a.mfma(AR[cb], F32(1, u), BO(1, cb, u), AR[cb])
            a.mfma(AI[cb], F32(2, u), BO(0, cb, u), AI[cb])
    for b in range(2):
        for g in range(4): sinkL(b, g)
    a.wait(lg="all"); a.barrier()
    OUT = lambda j: V(16 + 4 * j, 4)
    a.salu("s_lshl_b32", sT0, sG, 16)
    a.salu("s_lshl_b32", sT1, sW, 13)
    a.salu("s_add_u32", sT0, sT0, sT1)
    a.salu("s_add_u32", sT0, sT0, WS_YF)
    a.salu("s_add_u32", sT1, sT0, 4096)
    for j in range(8):
        if j % 2 == 0:
            a.valu("v_xor_b32", vO2, (j >> 1) * 8, vOA)
        for q in range(2):
            a.dsr("ds_read_b64_tr_b16", OUT(j)[2 * q:2 * q + 2], vO2, off=q * 4 * C_RS + j * 64, tag=f"o{j}")
        if j >= 3:
            a.wait(lg=f"o{j - 3}")
            a.bstore("buffer_store_dwordx4", OUT(j - 3), vL16, rWS, (sT0, sT1)[(j - 3) >> 2], off=((j - 3) & 3) * 1024, mods="sc1")
    for j in range(5, 8):
        a.wait(lg=f"o{j}")
        a.bstore("buffer_store_dwordx4", OUT(j), vL16, rWS, sT1, off=(j & 3) * 1024, mods="sc1")
    if flags:
        a.wait(vm="all"); a.barrier()
        a.salu("s_cmp_lg_u32", None, sW, 0)
        a.branch("s_cbranch_scc1", "K2_END")
        a.salu("s_lshl_b32", sT0, sG, 2)
        a.valu("v_mov_b32", vT0, sT0)
        a.valu("v_mov_b32", vT1, 1)
        a.salu("s_mov_b64", EXEC, 1)
        a.bstore("buffer_store_dword", vT1, vT0, rDBG, 0, mods="sc1")
    a.misc("s_endpgm")


def gen_gemm2(a, flags, idbase):
    sW, sMT, sNT, sT0, sT1, sT2, sT3, sSO, sM0, sH0, sH1 = S(3), S(16), S(17), S(18), S(19), S(20), S(21), S(22), S(23), S(56), S(57)
    pX, pT, pWD, pOUT, pDBG, pWS = S(4, 2), S(6, 2), S(8, 2), S(10, 2), S(12, 2), S(14, 2)
    rX, rWD, rOUT, rDBG, rWS, rTI, rYF = S(24, 4), S(28, 4), S(32, 4), S(36, 4), S(40, 4), S(44, 4), S(48, 4)
    sCNT = S(58)
    lane, vW, vL16 = V(1), V(2), V(3)
    aT = [V(4), V(5)]
    t0, t1, t2, t3, vXO, vFL, vFV = V(6), V(7), V(8), V(9), V(10), V(11), V(12)
    HF = lambda i, sb: V(16 + 4 * (2 * i + sb), 4)
    ACC = lambda db, sb: V(128 + 16 * (2 * db + sb), 16)
    AF = lambda buf, db: V(192 + 4 * (2 * buf + db), 4)
    TI = lambda j, db: V(208 + 4 * (2 * j + db), 4)
    XV = V(240, 4)
    YF = lambda j, sb: V(16 + 4 * (2 * j + sb), 4)

    a.label("K2_GEMM")
    a.sload("s_load_dwordx2", pX, S(0, 2), 0)
    a.sload("s_load_dwordx8", S(8, 8), S(0, 2), 48)
    a.valu("v_and_b32", lane, 63, V(0))
    a.valu("v_lshrrev_b32", t0, 6, V(0))
    a.valu("v_readfirstlane_b32", sW, t0)
    a.valu("v_lshlrev_b32", vL16, 4, lane)
    a.salu("s_sub_u32", sT0, S(2), idbase)
    a.salu("s_and_b32", sT1, sT0, 7)
    a.salu("s_lshr_b32", sT0, sT0, 3)
    a.salu("s_lshl_b32", sMT, sT1, 2)
    a.salu("s_and_b32", sT2, sT0, 3)
    a.salu("s_add_u32", sMT, sMT, sT2)
    a.salu("s_lshr_b32", sNT, sT0, 2)
    a.valu("v_lshrrev_b32", t0, 3, lane)
    a.valu("v_mul_u32_u24", t1, 896, t0)
    a.valu("v_and_b32", t2, 7, lane)
    a.valu("v_lshlrev_b32", t0, 1, t0)
    a.valu("v_and_b32", t0, 4, t0)
    a.valu("v_xor_b32", t2, t2, t0)
    a.valu("v_lshl_add_u32", t1, t2, 4, t1)
    a.salu("s_lshl_b32", sT0, sNT, 7)
    a.valu("v_add_u32", vW, sT0, t1)
    getpc(a, pT, "TAB_I")
    srd(a, 44, pT, 29 * 14 * 1024)
    a.salu("s_mul_i32", sSO, sW, 224 * 896)
    a.salu("s_mul_i32", sM0, sW, 20480)
    a.salu("s_mul_i32", sH0, sMT, 224)
    a.salu("s_mul_i32", sT0, sW, 14)
    a.salu("s_add_u32", sH0, sH0, sT0)
    a.salu("s_lshl_b32", sH0, sH0, 10)
    a.salu("s_add_u32", sH1, sH0, 112 * 1024)
    a.misc("s_waitcnt lgkmcnt(0)", "wait")
    srd(a, 28, pWD, 1792 * 896)
    srd(a, 40, pWS, WS_SIZE)
    srd(a, 24, pX, 2048 * 896)
    srd(a, 32, pOUT, 2048 * 896)
    srd(a, 36, pDBG, 256)
    srd(a, 48, pWS, 29 * 65536, add=WS_YF)

    def wload(i):
        slot = i % 10
        for half in range(2):
            a.salu("s_add_u32", sT0, sM0, slot * 2048 + half * 1024)
            a.salu("s_mov_b32", M0, sT0)
            a.salu("s_add_u32", sT1, sSO, (16 * i + 8 * half) * 896)
            a.bload("buffer_load_dwordx4", None, vW, rWD, sT1, lds=True, tag=f"w{i}")
    def hload(i):
        if i and i % 4 == 0:
            a.salu("s_add_u32", sH0, sH0, 4096)
            a.salu("s_add_u32", sH1, sH1, 4096)
        for sb in range(2):
            a.bload("buffer_load_dwordx4", HF(i, sb), vL16, rWS, (sH0, sH1)[sb], off=(i % 4) * 1024, tag=f"h{i}")
    for i in range(14):
        if i < 10: wload(i)
        hload(i)
    a.salu("s_mul_i32", sT0, sW, 14)
    a.salu("s_lshl_b32", sT1, sNT, 1)
    a.salu("s_add_u32", sT0, sT0, sT1)
    a.salu("s_lshl_b32", sT0, sT0, 10)
    for j in range(4):
        for db in range(2):
            a.bload("buffer_load_dwordx4", TI(j, db), vL16, rTI, sT0, off=db * 1024, tag="ti")
        if j < 3: a.salu("s_add_u32", sT0, sT0, 8 * 14 * 1024)
    a.valu("v_and_b32", t0, 31, lane)
    a.valu("v_mul_u32_u24", t0, 57344, t0)
    a.salu("s_lshl_b32", sT0, sMT, 1)
    a.salu("s_bfe_u32", sT1, sW, (1 << 16) | 1)
    a.salu("s_add_u32", sT0, sT0, sT1)
    a.salu("s_mul_i32", sT0, sT0, 896)
    a.salu("s_lshl_b32", sT1, sNT, 7)
    a.salu("s_add_u32", sT0, sT0, sT1)
    a.salu("s_lshr_b32", sT1, sW, 2)
    a.salu("s_lshl_b32", sT1, sT1, 6)
    a.salu("s_add_u32", sT0, sT0, sT1)
    a.salu("s_and_b32", sT1, sW, 1)
    a.salu("s_lshl_b32", sT1, sT1, 5)
    a.salu("s_add_u32", sT0, sT0, sT1)
    a.valu("v_add_u32", vXO, sT0, t0)
    a.valu("v_lshrrev_b32", t1, 5, lane)
    a.valu("v_lshl_add_u32", t0, t1, 3, vXO)
    a.bload("buffer_load_dwordx2", XV[0:2], t0, rX, 0, tag="xv")
    a.bload("buffer_load_dwordx2", XV[2:4], t0, rX, 0, off=16, tag="xv")
    a.valu("v_lshl_add_u32", vXO, t1, 4, vXO)
    a.valu("v_lshrrev_b32", t0, 5, lane)
    a.valu("v_bfe_u32", t1, lane, 2, 2)
    a.valu("v_lshl_add_u32", t0, t0, 3, t1)
    a.valu("v_lshlrev_b32", t0, 7, t0)
    a.valu("v_bfe_u32", t2, lane, 4, 1)
    a.valu("v_lshlrev_b32", t2, 5, t2)
    a.valu("v_and_b32", t3, 3, lane)
    a.valu("v_lshl_add_u32", t2, t3, 3, t2)
    a.valu("v_lshrrev_b32", t1, 1, t1)
    a.valu("v_lshl_add_u32", t2, t1, 6, t2)
    a.valu("v_add_u32", t0, t0, t2)
    a.valu("v_add_u32", aT[0], sM0, t0)
    a.valu("v_xor_b32", aT[1], 64, aT[0])
    a.valu("v_and_b32", t0, 3, lane)
    a.valu("v_lshl_add_u32", t0, t0, 3, sW)
    a.valu("v_min_u32", t0, 28, t0)
    a.valu("v_lshlrev_b32", vFL, 2, t0)

    def reads(i):
        slot = i % 10
        for db in range(2):
            for q in range(2):
                a.dsr("ds_read_b64_tr_b16", AF(i & 1, db)[2 * q:2 * q + 2], aT[db], off=slot * 2048 + q * 512, tag=f"r{i}")
    a.wait(vm="w0"); reads(0)
    for i in range(14):
        if i + 1 < 14:
            a.wait(vm=f"w{i + 1}"); reads(i + 1)
        a.wait(vm=f"h{i}", lg=f"r{i}")
        for db in range(2):
            for sb in range(2):
                a.mfma(ACC(db, sb), AF(i & 1, db), HF(i, sb), ACC(db, sb) if i else None)
        if i < 4: wload(10 + i)
    if flags:
        a.salu("s_mov_b32", sCNT, 0)
        a.label("K2_POLL", keep=True)
        a.bload("buffer_load_dword", vFV, vFL, rDBG, 0, mods="sc1")
        a.wait(vm="all")
        a.valu("v_cmp_eq_u32", VCC, 0, vFV)
        a.branch("s_cbranch_vccz", "K2_GO")
        a.salu("s_add_u32", sCNT, sCNT, 1)
        a.salu("s_cmp_ge_u32", None, sCNT, 200000)
        a.branch("s_cbranch_scc1", "K2_GO")
        a.misc("s_sleep 4")
        a.branch("s_branch", "K2_POLL")
        a.label("K2_GO", keep=True)
    a.salu("s_lshl_b32", sT0, sW, 6)
    a.salu("s_lshl_b32", sT1, sMT, 1)
    a.salu("s_add_u32", sT0, sT0, sT1)
    a.salu("s_lshl_b32", sT0, sT0, 10)
    for j in range(4):
        for sb in range(2):
            a.bload("buffer_load_dwordx4", YF(j, sb), vL16, rYF, sT0, off=sb * 1024, mods="sc1", tag=f"y{j}")
        if j < 3: a.salu("s_add_u32", sT0, sT0, 8 * 65536)
    for j in range(4):
        a.wait(vm=f"y{j}")
        for db in range(2):
            for sb in range(2):
                a.mfma(ACC(db, sb), TI(j, db), YF(j, sb), ACC(db, sb))
    a.valu("v_add_u32", t0, sM0, vL16)
    for db in range(2):
        for sb in range(2):
            for g in range(4):
                a.dsw("ds_write_b128", t0, ACC(db, sb)[4 * g:4 * g + 4], off=((2 * db + sb) * 4 + g) * 1024)
    a.wait(lg="all"); a.barrier()
    a.salu("s_lshl_b32", sT0, sW, 11)
    a.valu("v_add_u32", t0, sT0, vL16)
    a.valu("v_add_u32", t1, 61440, t0)
    a.valu("v_add_u32", t2, 122880, t0)
    RD = lambda k, u: V(16 + 8 * k + 4 * u, 4)
    for k in range(8):
        ad, o = ((t0, k) if k < 3 else ((t1, k - 3) if k < 6 else (t2, k - 6)))
        for u in range(2):
            a.dsr("ds_read_b128", RD(k, u), ad, off=o * 20480 + u * 1024, tag=f"rd{k}")
        if k == 6: a.wait(lg="rd1")
    SUM = V(96, 8)
    for e in range(4):
        pass
    a.wait(vm="xv")
    for u in range(2):
        for e in range(4):
            src = XV[2 * u + (e >> 1)]
            if e & 1: a.valu("v_and_b32", SUM[4 * u + e], 0xffff0000, src)
            else: a.valu("v_lshlrev_b32", SUM[4 * u + e], 16, src)
    for k in range(8):
        a.wait(lg=f"rd{k}")
        for u in range(2):
            for e in range(4):
                a.valu("v_add_f32", SUM[4 * u + e], SUM[4 * u + e], RD(k, u)[e])
    PK = V(104, 4)
    for i in range(4):
        a.valu("v_cvt_pk_bf16_f32", PK[i], SUM[2 * i], SUM[2 * i + 1])
    a.valu("v_permlane32_swap_b32", PK[0], PK[2])
    a.valu("v_permlane32_swap_b32", PK[1], PK[3])
    a.bstore("buffer_store_dwordx4", PK, vXO, rOUT, 0)
    a.misc("s_endpgm")

def hexdump(arr_u16):
    a32 = np.asarray(arr_u16, dtype=np.uint16).view(np.uint64)
    lines = []
    for i in range(0, len(a32), 8):
        lines.append(".quad " + ",".join("0x%x" % int(v) for v in a32[i:i + 8]))
    return "\n".join(lines)

def bfarr(x):
    u = np.asarray(x, dtype=np.float32).view(np.uint32).astype(np.uint64)
    return (((u + 0x7FFF + ((u >> 16) & 1)) >> 16) & 0xFFFF).astype(np.uint16)

def clean(x):
    x = np.asarray(x, dtype=np.float64).copy(); x[np.abs(x) < 1e-12] = 0.0
    return x + 0.0

SC = 2.0 / (448 * 2048)
def tab_c():
    lane = np.arange(64); i = lane & 31; h = lane >> 5; e = np.arange(8)
    out = []
    for c in range(3):
        for u in range(2):
            k = 16 * u + 8 * h[:, None] + e[None, :]
            ang = 2 * np.pi * ((i[:, None] * k) % 32) / 32
            v = (np.cos(ang), -np.sin(ang), np.sin(ang))[c]
            out.append(bfarr(clean(v)).ravel())
    for c in range(2):
        for rb in range(2):
            for ks in range(4):
                b, u = ks >> 1, ks & 1
                k = 32 * b + 16 * u + (e[None, :] & 3) + 8 * (e[None, :] >> 2) + 4 * h[:, None]
                ang = 2 * np.pi * (((32 * rb + i[:, None]) * k) % 64) / 64
                v = (np.cos(ang), -np.sin(ang))[c]
                out.append(bfarr(clean(v)).ravel())
    e4 = np.arange(4)
    for b in range(2):
        for g in range(4):
            n2 = 32 * b + 8 * g + 4 * h[:, None] + e4[None, :]
            ang = 2 * np.pi * (n2 * i[:, None]) / 2048
            for c in range(2):
                v = (np.cos(ang), -np.sin(ang))[c]
                out.append(clean(v).astype(np.float32).ravel().view(np.uint16))
    out.append(np.zeros(1024, dtype=np.uint16))
    r = np.concatenate(out)
    assert r.size * 2 == 40960, r.size
    return r

def tab_i_block(g):
    lane = np.arange(64); i = lane & 31; h = lane >> 5; e = np.arange(8)
    out = []
    for db in range(14):
        d = 32 * db + i[:, None]; kd = 8 * g + e[None, :]
        ang = 2 * np.pi * ((d * kd) % 448) / 448
        sc = np.where((kd == 0) | (kd == 224), SC / 2, np.where(kd > 224, 0.0, SC))
        v = np.where(h[:, None] == 0, clean(np.cos(ang)), clean(-np.sin(ang))) * sc
        out.append(bfarr(v + 0.0).ravel())
    return np.concatenate(out)

def gen_tables():
    L = ['.section .rodata,"a"', ".p2align 12"]
    idx = np.arange(448); ang = 2 * np.pi * idx / 448
    co, ns = clean(np.cos(ang)), clean(-np.sin(ang))
    for nm, arr in (("c", co), ("n", ns), ("C", co * SC), ("N", ns * SC)):
        b = bfarr(arr + 0.0)
        for k in range(448): L.append(f".set z{nm}{k},{int(b[k])}")
    L.append(".altmacro")
    L.append(""".macro e4 p,a,b,c,d
.short z\\p\\()\\a,z\\p\\()\\b,z\\p\\()\\c,z\\p\\()\\d
.endm
.macro frow p,d,k0,n
.set zk,\\k0
.rept \\n
e4 \\p,%((\\d*zk)%448),%((\\d*(zk+1))%448),%((\\d*(zk+2))%448),%((\\d*(zk+3))%448)
.set zk,zk+4
.endr
.endm
.macro e1 p,a
.short z\\p\\()\\a
.endm
.macro ftile p,k0
.set zd,0
.rept 448
frow \\p,%zd,\\k0,16
.set zd,zd+1
.endr
.endm
.macro ftile3 p
.set zd,0
.rept 448
frow \\p,%zd,192,8
e1 \\p,%((zd*224)%448)
.fill 31,2,0
.set zd,zd+1
.endr
.endm
.macro iblk g
.set zb,0
.rept 14
.set zd,zb
.rept 32
frow C,%zd,%(8*\\g),2
.set zd,zd+1
.endr
.set zd,zb
.rept 32
frow N,%zd,%(8*\\g),2
.set zd,zd+1
.endr
.set zb,zb+32
.endr
.endm""")
    L.append("TAB_F:")
    for j in range(3):
        L.append(f"ftile c,{64 * j}"); L.append(f"ftile n,{64 * j}")
    L.append("ftile3 c"); L.append("ftile3 n")
    L.append("TAB_I:")
    L.append(hexdump(tab_i_block(0)))
    for g in range(1, 28): L.append(f"iblk {g}")
    L.append(hexdump(tab_i_block(28)))
    L.append(".noaltmacro")
    L.append("TAB_C:")
    L.append(hexdump(tab_c()))
    return "\n".join(L) + "\n"

def kd(name, nv, ns):
    return f""".p2align 6
.amdhsa_kernel {name}
  .amdhsa_next_free_vgpr {nv}
  .amdhsa_next_free_sgpr {ns}
  .amdhsa_accum_offset {(nv + 3) // 4 * 4}
  .amdhsa_group_segment_fixed_size 0
  .amdhsa_kernarg_size 80
  .amdhsa_user_sgpr_count 2
  .amdhsa_user_sgpr_kernarg_segment_ptr 1
  .amdhsa_system_sgpr_workgroup_id_x 1
  .amdhsa_float_denorm_mode_32 3
.end_amdhsa_kernel
"""

def build(mode="fused"):
    a = Asm()
    head = open("cdna_kernels/" + NAME + ".s.ref").read().split("; Override launch")[0]
    launches = [f"; @launch kernel=k1_kernel grid=(256,1,1) block=(512,1,1) lds={K1_LDS}"]
    gen_k1(a)
    kds = kd("k1_kernel", 240, 64)
    if mode == "fused":
        launches.append(f"; @launch kernel=k2_kernel grid=(256,1,1) block=(512,1,1) lds={K2_LDS}")
        a2 = Asm(); a2.nlabel = 1000
        a2.raw(".p2align 8\nk2_kernel:")
        a2.salu("s_cmp_ge_u32", None, S(2), 256)
        a2.branch("s_cbranch_scc1", "K2_END")
        a2.salu("s_cmp_lt_u32", None, S(2), 32)
        a2.branch("s_cbranch_scc1", "K2_COL")
        gen_gemm2(a2, True, 32)
        a2.vm, a2.lg = [], []
        gen_colfft(a2, True)
        a2.label("K2_END"); a2.misc("s_endpgm")
        body2 = a2.text()
        kds += kd("k2_kernel", 256, 64)
    else:
        launches.append(f"; @launch kernel=k2a_kernel grid=(29,1,1) block=(512,1,1) lds={K2_LDS}")
        launches.append(f"; @launch kernel=k2b_kernel grid=(224,1,1) block=(512,1,1) lds={K2_LDS}")
        a2 = Asm(); a2.nlabel = 1000
        a2.raw(".p2align 8\nk2a_kernel:")
        gen_colfft(a2, False)
        a2.label("K2_END"); a2.misc("s_endpgm")
        a2.vm, a2.lg = [], []
        a2.raw(".p2align 8\nk2b_kernel:")
        a2.salu("s_cmp_ge_u32", None, S(2), 224)
        a2.branch("s_cbranch_scc1", "K2_END")
        gen_gemm2(a2, False, 0)
        body2 = a2.text()
        kds += kd("k2a_kernel", 256, 64) + kd("k2b_kernel", 256, 64)
    txt = head + "\n".join(launches) + "\n" + '.amdgcn_target "amdgcn-amd-amdhsa--gfx950"\n.text\n' + a.text() + body2
    txt += '.section .rodata,"a"\n' + kds + gen_tables()
    return txt

if __name__ == "__main__":
    mode = sys.argv[1] if len(sys.argv) > 1 else "fused"
    out = sys.argv[2] if len(sys.argv) > 2 else "cdna_kernels/" + NAME + ".s"
    open(out, "w").write(build(mode))
    print("wrote", out)
```

```python
import sys, math
import numpy as np
from dsl import *

NAME = "parallel_sum__spectral_gfnet__glu_gated_reglu__prompt"
WS_H   = 0
WS_X1T = 0x800000
WS_WT  = 0xA00000
WS_YF  = 0xC00000
WS_SIZE = 0x1000000
SRD3 = 0x00020000

def bf16bits(x):
    u = np.array([x], dtype=np.float32).view(np.uint32)[0]
    return int(((int(u) + 0x7FFF + ((int(u) >> 16) & 1)) >> 16) & 0xFFFF)

def srd(a, base, ptr, size, add=None):
    if add:
        a.salu("s_add_u32", S(base), ptr[0], add)
        a.salu("s_addc_u32", S(base + 1), ptr[1], 0)
    else:
        a.salu("s_mov_b32", S(base), ptr[0])
        a.salu("s_mov_b32", S(base + 1), ptr[1])
    a.salu("s_mov_b32", S(base + 2), size)
    a.salu("s_mov_b32", S(base + 3), SRD3)

def getpc(a, dst, sym):
    a.misc(f"s_getpc_b64 {dst}", "salu", w=[dst])
    a.misc(f"s_add_u32 {dst[0]}, {dst[0]}, {sym}@rel32@lo+4", "salu", r=[dst], w=[dst])
    a.misc(f"s_addc_u32 {dst[1]}, {dst[1]}, {sym}@rel32@hi+12", "salu", r=[dst], w=[dst])

def bf16r(a, x, tmp):
    a.valu("v_cvt_pk_bf16_f32", tmp, x, x)
    a.valu("v_lshlrev_b32", x, 16, tmp)

def half_sum(a, x, tmp):
    a.valu("v_mov_b32", tmp, x)
    a.valu("v_permlane32_swap_b32", x, tmp)
    a.valu("v_add_f32", x, x, tmp)

import os
EXP = os.environ.get("EXP", "").split(",")
STAMP = False
WS_DBG = 0xE00000
def stamp(a, i, real=False):
    if not STAMP: return
    assert i < 18
    a.misc(f"{'s_memrealtime' if real else 's_memtime'} s[{64 + 2 * i}:{65 + 2 * i}]", "smem", w=[S(64 + 2 * i, 2)])
    a.misc("s_waitcnt lgkmcnt(0)", "wait"); a.lg = []
def stamp_flush(a, n, rWS, sW, kidx, tv0, tv1, st):
    if not STAMP: return
    a.salu("s_lshl_b32", st, S(2), 3)
    a.salu("s_add_u32", st, st, sW)
    a.salu("s_lshl_b32", st, st, 7)
    a.salu("s_add_u32", st, st, WS_DBG + kidx * 0x40000)
    a.valu("v_mov_b32", tv0, st)
    a.salu("s_mov_b64", EXEC, 1)
    for i in range(n):
        a.valu("v_mov_b32", tv1, S(64 + 2 * i))
        a.bstore("buffer_store_dword", tv1, tv0, rWS, 0, off=4 * i)
        a.nop(2)
    a.salu("s_mov_b64", EXEC, -1)

K1_CB = 114688
K1_ST = K1_CB + 512
K1_LDS = K1_ST + 2048

def gen_k1(a):
    sW, sMT, sNT, sSTR, sCOL, sT0, sT1, sN2, sSO = S(3), S(16), S(17), S(18), S(19), S(20), S(21), S(22), S(23)
    pX, pWR, pWI, pWS, pWG, pWU = S(4, 2), S(6, 2), S(8, 2), S(10, 2), S(12, 2), S(14, 2)
    rX, rB0, rB1, rWR, rWI, rWS = S(24, 4), S(28, 4), S(32, 4), S(36, 4), S(40, 4), S(44, 4)
    pT = S(48, 2); sONE = S(52); sM0 = S(53); sCH = S(54); sT2 = S(55); sT3 = S(56)
    sJ = [S(57), S(58), S(59)]
    lane, vX, vB = V(1), V(2), V(3)
    aT = [V(4), V(5), V(6), V(7)]
    vSUM, vSQ, vCG, vCU = V(8), V(9), V(10), V(11)
    t0, t1, t2, t3 = V(12), V(13), V(14), V(15)
    XF = [V(16 + 4 * t, 4) for t in range(28)]
    ACC = [V(128 + 16 * s, 16) for s in range(4)]
    BF = [[V(192 + 16 * b + 4 * s, 4) for s in range(4)] for b in range(2)]
    WTMP = V(224, 8); vWO, vWD = V(232), V(233)
    vM, vR, vR2, vMR = V(234), V(235), V(236), V(237)
    vST = V(238); vCA = V(239)

    a.raw(".p2align 8\nk1_kernel:")
    a.salu("s_cmp_ge_u32", None, S(2), 256)
    a.branch("s_cbranch_scc1", "K1_END")
    stamp(a, 0, real=True); stamp(a, 1)
    a.sload("s_load_dwordx4", S(4, 4), S(0, 2), 0)
    a.sload("s_load_dwordx2", pWI, S(0, 2), 16)
    a.sload("s_load_dwordx4", S(12, 4), S(0, 2), 32)
    a.sload("s_load_dwordx2", pWS, S(0, 2), 72)
    a.valu("v_and_b32", lane, 63, V(0))
    a.valu("v_lshrrev_b32", t0, 6, V(0))
    a.valu("v_readfirstlane_b32", sW, t0)
    a.salu("s_and_b32", sT0, S(2), 7)
    a.salu("s_lshr_b32", sT1, S(2), 3)
    a.salu("s_and_b32", sMT, sT0, 1)
    a.salu("s_lshl_b32", sMT, sMT, 2)
    a.salu("s_and_b32", sT2, sT1, 3)
    a.salu("s_add_u32", sMT, sMT, sT2)
    a.salu("s_lshr_b32", sNT, sT0, 1)
    a.salu("s_lshl_b32", sNT, sNT, 3)
    a.salu("s_lshr_b32", sT2, sT1, 2)
    a.salu("s_add_u32", sNT, sNT, sT2)
    if "badmap" in EXP:
        a.salu("s_mov_b32", sNT, sT1)
        a.salu("s_add_u32", sMT, sT0, sT1)
        a.salu("s_and_b32", sMT, sMT, 7)
    a.salu("s_lshl_b32", sN2, sMT, 3)
    a.salu("s_add_u32", sN2, sN2, sW)
    a.salu("s_mov_b32", sONE, 0x3f803f80)
    a.valu("v_and_b32", t0, 31, lane)
    a.valu("v_mul_u32_u24", t0, 57344, t0)
    a.valu("v_lshrrev_b32", t1, 5, lane)
    a.valu("v_lshl_add_u32", t0, t1, 4, t0)
    a.salu("s_mul_i32", sT0, sN2, 896)
    a.valu("v_add_u32", vX, sT0, t0)
    if "e1" in EXP:
        a.valu("v_and_b32", t0, 31, lane)
        a.valu("v_mul_u32_u24", t0, 896, t0)
        a.valu("v_lshl_add_u32", t0, t1, 4, t0)
        a.salu("s_mul_i32", sT0, sN2, 896 * 32)
        a.valu("v_add_u32", vX, sT0, t0)
    if "e2" in EXP:
        a.valu("v_lshlrev_b32", t0, 4, lane)
        a.salu("s_mul_i32", sT0, sN2, 896 * 32)
        a.valu("v_add_u32", vX, sT0, t0)
    getpc(a, pT, "TAB_F")
    a.misc("s_waitcnt lgkmcnt(0)", "wait")
    srd(a, 24, pX, 2048 * 896)
    srd(a, 36, pWR, 2048 * 450)
    srd(a, 40, pWI, 2048 * 450)
    srd(a, 44, pWS, WS_SIZE)
    a.salu("s_cmp_ge_u32", None, sNT, 28)
    a.branch("s_cbranch_scc1", "K1_SETD")
    a.salu("s_movk_i32", sSTR, 3584)
    a.salu("s_lshl_b32", sCOL, sNT, 7)
    srd(a, 28, pWG, 448 * 3584)
    srd(a, 32, pWU, 448 * 3584)
    a.branch("s_branch", "K1_SETE")
    a.label("K1_SETD")
    a.salu("s_movk_i32", sSTR, 128)
    a.salu("s_mov_b32", sCOL, 0)
    a.salu("s_sub_u32", sT0, sNT, 28)
    a.salu("s_mul_i32", sT0, sT0, 114688)
    a.salu("s_add_u32", pT[0], pT[0], sT0)
    a.salu("s_addc_u32", pT[1], pT[1], 0)
    srd(a, 28, pT, 57344)
    srd(a, 32, pT, 57344, add=57344)
    a.label("K1_SETE")
    a.valu("v_lshrrev_b32", t0, 3, lane)
    a.salu("s_lshl_b32", sT0, sW, 3)
    a.valu("v_add_u32", t1, sT0, t0)
    a.valu("v_mul_lo_u32", t1, t1, sSTR)
    a.valu("v_and_b32", t2, 7, lane)
    a.valu("v_lshlrev_b32", t0, 1, t0)
    a.valu("v_and_b32", t0, 4, t0)
    a.valu("v_xor_b32", t2, t2, t0)
    a.valu("v_lshl_add_u32", t1, t2, 4, t1)
    a.valu("v_add_u32", vB, sCOL, t1)
    a.salu("s_lshl_b32", sCH, sSTR, 6)
    a.salu("s_mov_b32", sSO, 0)
    a.salu("s_lshl_b32", sM0, sW, 10)
    for c in range(7):
        a.salu("s_mov_b32", M0, sM0)
        a.bload("buffer_load_dwordx4", None, vB, rB0, sSO, lds=True, tag=f"c{c}")
        a.salu("s_add_u32", sT0, sM0, 57344)
        a.salu("s_mov_b32", M0, sT0)
        a.bload("buffer_load_dwordx4", None, vB, rB1, sSO, lds=True, tag=f"c{c}")
        for t in range(4 * c, 4 * c + 4):
            if "e3" in EXP: continue
            if "e2" in EXP:
                a.bload("buffer_load_dwordx4", XF[t], vX, rX, 0, off=1024 * (t & 3), tag=f"c{c}")
                if t & 3 == 3: a.valu("v_add_u32", vX, 4096, vX)
                continue
            a.bload("buffer_load_dwordx4", XF[t], vX, rX, 0, off=32 * t, tag=f"c{c}")
        if c < 6:
            a.salu("s_add_u32", sSO, sSO, sCH)
            a.salu("s_add_u32", sM0, sM0, 8192)
    a.salu("s_lshr_b32", sT0, sW, 2)
    a.salu("s_lshl_b32", sT1, S(2), 1)
    a.salu("s_add_u32", sT0, sT0, sT1)
    a.salu("s_and_b32", sT1, sT0, 31)
    a.salu("s_lshr_b32", sT2, sT0, 5)
    a.salu("s_lshl_b32", sT3, sT2, 7)
    a.salu("s_add_u32", sT3, sT3, sT1)
    a.salu("s_mul_i32", sT3, sT3, 450)
    a.valu("v_and_b32", t0, 255, V(0))
    a.valu("v_lshl_add_u32", t1, t0, 1, sT3)
    a.valu("v_mov_b32", t2, 0x40000000)
    a.valu("v_cmp_gt_u32", VCC, 225, t0)
    a.valu("v_cndmask_b32", vWO, t2, t1, VCC)
    for j in range(3): a.salu("s_mov_b32", sJ[j], 14400 * (j + 1))
    for j in range(4):
        a.bload("buffer_load_ushort", WTMP[j], vWO, rWR, (sJ[j - 1] if j else 0), tag="wt")
    for j in range(4):
        a.bload("buffer_load_ushort", WTMP[4 + j], vWO, rWI, (sJ[j - 1] if j else 0), tag="wt")
    a.salu("s_lshr_b32", sT3, sT2, 1)
    a.salu("s_lshl_b32", sT3, sT3, 10)
    a.salu("s_and_b32", sT2, sT2, 1)
    a.salu("s_lshl_b32", sT2, sT2, 5)
    a.salu("s_add_u32", sT2, sT2, sT1)
    a.salu("s_lshl_b32", sT2, sT2, 4)
    a.salu("s_add_u32", sT3, sT3, sT2)
    a.salu("s_add_u32", sT3, sT3, WS_WT)
    a.valu("v_lshl_add_u32", vWD, t0, 13, sT3)
    a.valu("v_lshrrev_b32", t0, 5, lane)
    a.valu("v_bfe_u32", t1, lane, 2, 2)
    a.valu("v_lshl_add_u32", t0, t0, 3, t1)
    a.valu("v_lshlrev_b32", t0, 7, t0)
    a.valu("v_bfe_u32", t2, lane, 4, 1)
    a.valu("v_lshlrev_b32", t2, 5, t2)
    a.valu("v_and_b32", t3, 3, lane)
    a.valu("v_lshl_add_u32", t2, t3, 3, t2)
    a.valu("v_lshrrev_b32", t1, 1, t1)
    a.salu("s_and_b32", sT0, sW, 1)
    a.valu("v_xor_b32", t1, sT0, t1)
    a.valu("v_lshl_add_u32", t2, t1, 6, t2)
    a.valu("v_add_u32", aT[0], t0, t2)
    a.valu("v_xor_b32", aT[1], 64, aT[0])
    a.valu("v_add_u32", aT[2], 57344, aT[0])
    a.valu("v_add_u32", aT[3], 57344, aT[1])
    a.valu("v_and_b32", t0, 127, V(0))
    a.valu("v_lshlrev_b32", t0, 2, t0)
    a.valu("v_add_u32", t0, K1_CB, t0)
    a.valu("v_mov_b32", t1, 0)
    a.dsw("ds_write_b32", t0, t1, tag="z")
    for x in (vSUM, vSQ, vCG, vCU): a.valu("v_mov_b32", x, 0)
    a.salu("s_lshr_b32", sT0, sW, 1)
    a.salu("s_cmp_eq_u32", None, sT0, 1)
    a.salu("s_cselect_b64", VCC, -1, 0)
    a.salu("s_cmp_ge_u32", None, sNT, 28)
    a.branch("s_cbranch_scc1", "K1_DFT")
    vm0, lg0 = list(a.vm), list(a.lg)

    def reads(t):
        for s in range(4):
            for q in range(2):
                a.dsr("ds_read_b64_tr_b16", BF[t & 1][s][2 * q:2 * q + 2], aT[s], off=(16 * t + 4 * q) * 128, tag=f"r{t}")

    def main(kind):
        a.salu("s_cmp_lg_u32", None, sT0, 0)
        stamp(a, 2)
        a.wait(vm="c0"); stamp(a, 3); a.barrier(); stamp(a, 4); reads(0)
        for t in range(28):
            if t + 1 < 28:
                if (t + 1) % 4 == 0:
                    a.wait(vm=f"c{(t + 1) // 4}"); a.barrier(); stamp(a, 4 + (t + 1) // 4)
                reads(t + 1)
            a.wait(lg=f"r{t}")
            for s in range(4):
                c = ACC[s] if t else None
                if kind == "ffn": a.mfma(ACC[s], BF[t & 1][s], XF[t], c)
                else: a.mfma(ACC[s], XF[t], BF[t & 1][s], c)
                if "nodot" in EXP: continue
                a.valu("v_dot2c_f32_bf16", vSUM, sONE, XF[t][s])
                a.valu("v_dot2c_f32_bf16", vSQ, XF[t][s], XF[t][s])
            if "nodot" in EXP: continue
            L = a.newlabel("K1S")
            a.branch("s_cbranch_scc1" if t % 2 == 0 else "s_cbranch_vccz", L)
            a.opt = True
            for i in range(4):
                a.valu("v_dot2c_f32_bf16", vCG, sONE, BF[t & 1][0][i])
                a.valu("v_dot2c_f32_bf16", vCU, sONE, BF[t & 1][2][i])
            a.opt = False
            a.label(L, keep=True)
        stamp(a, 11)
        L = a.newlabel("K1C")
        a.salu("s_cmp_ge_u32", None, sW, 4)
        a.branch("s_cbranch_scc1", L)
        a.opt = True
        half_sum(a, vCG, t0); half_sum(a, vCU, t0)
        a.salu("s_and_b32", sT1, sW, 1)
        a.salu("s_lshl_b32", sT1, sT1, 7)
        a.salu("s_add_u32", sT1, sT1, K1_CB)
        a.valu("v_lshl_add_u32", t1, lane, 2, sT1)
        a.misc("s_mov_b32 exec_hi, 0", "salu", w=[EXEC])
        a.dsw("ds_add_f32", t1, vCG)
        a.dsw("ds_add_f32", t1, vCU, off=256)
        a.misc("s_mov_b32 exec_hi, -1", "salu", w=[EXEC])
        a.opt = False
        a.label(L, keep=True)
        a.wait(vm="wt")
        for j in range(4):
            a.valu("v_lshl_or_b32", WTMP[j], WTMP[2 * j + 1], 16, WTMP[2 * j])
        a.bstore("buffer_store_dwordx4", WTMP[0:4], vWD, rWS, 0)
        half_sum(a, vSUM, t0); half_sum(a, vSQ, t0)
        a.valu("v_mul_f32", vM, 1.0 / 448, vSUM)
        a.valu("v_mul_f32", t1, 1.0 / 448, vSQ)
        a.valu("v_fma_f32", t1, -vM, vM, t1)
        a.valu("v_max_f32", t1, 0, t1)
        bf16r(a, vM, t0); bf16r(a, t1, t0)
        a.valu("v_add_f32", t1, 1e-5, t1)
        bf16r(a, t1, t0)
        a.valu("v_sqrt_f32", t1, t1)
        bf16r(a, t1, t0)
        a.valu("v_rcp_f32", vR, t1)
        a.wait(lg="all"); a.barrier(); stamp(a, 12)

    main("ffn")
    a.valu("v_mul_f32", vR2, vR, vR)
    a.valu("v_lshrrev_b32", t0, 5, lane)
    a.valu("v_lshlrev_b32", t0, 4, t0)
    a.salu("s_and_b32", sT1, sW, 1)
    a.salu("s_lshl_b32", sT1, sT1, 7)
    a.salu("s_add_u32", sT1, sT1, K1_CB)
    a.valu("v_add_u32", vCA, sT1, t0)
    a.valu("v_xor_b32", t0, 128, vCA)
    CV = [V(16 + 16 * s, 16) for s in range(4)]
    for p in range(2):
        for s in (p, p + 2):
            for g in range(4):
                a.dsr("ds_read_b128", CV[s][4 * g:4 * g + 4], (vCA if p == 0 else t0), off=(s >> 1) * 256 + g * 32, tag=f"cv{p}")
    a.salu("s_mul_i32", sT1, sN2, 112)
    a.salu("s_lshl_b32", sT2, sNT, 2)
    a.salu("s_add_u32", sT1, sT1, sT2)
    a.salu("s_and_b32", sT2, sW, 1)
    a.salu("s_lshl_b32", sT2, sT2, 1)
    a.salu("s_add_u32", sT1, sT1, sT2)
    a.salu("s_lshl_b32", sT1, sT1, 10)
    a.salu("s_xor_b32", sT2, sT1, 2048)
    a.valu("v_lshlrev_b32", vST, 4, lane)
    PK = V(96, 16)
    for p in range(2):
        a.wait(lg=f"cv{p}")
        G, U = ACC[p], ACC[p + 2]
        for r in range(16):
            a.valu("v_fma_f32", G[r], -vM, CV[p][r], G[r])
            a.valu("v_fma_f32", U[r], -vM, CV[p + 2][r], U[r])
            a.valu("v_max_f32", G[r], 0, G[r])
            a.valu("v_mul_f32", U[r], vR2, U[r])
            a.valu("v_mul_f32", G[r], G[r], U[r])
        pk = PK[8 * p:8 * p + 8]
        for i in range(8):
            a.valu("v_cvt_pk_bf16_f32", pk[i], G[2 * i], G[2 * i + 1])
        for q in range(2):
            a.valu("v_permlane32_swap_b32", pk[4 * q], pk[4 * q + 2])
            a.valu("v_permlane32_swap_b32", pk[4 * q + 1], pk[4 * q + 3])
            a.bstore("buffer_store_dwordx4", pk[4 * q:4 * q + 4], vST, rWS, (sT1 if p == 0 else sT2), off=q * 1024)
    stamp(a, 13); a.wait(vm="all") if STAMP else None; stamp(a, 14); stamp(a, 15, real=True)
    stamp_flush(a, 16, rWS, sW, 0, t0, t1, sT0)
    a.misc("s_endpgm")

    a.label("K1_DFT")
    a.vm, a.lg = list(vm0), list(lg0)
    main("dft")
    a.valu("v_mul_f32", vMR, vM, vR)
    a.salu("s_lshl_b32", sT1, sW, 8)
    a.salu("s_add_u32", sT1, sT1, K1_ST)
    a.valu("v_and_b32", t0, 31, lane)
    a.valu("v_lshl_add_u32", t1, t0, 2, sT1)
    a.dsw("ds_write_b32", t1, vR)
    a.dsw("ds_write_b32", t1, vMR, off=128)
    a.valu("v_lshrrev_b32", t2, 5, lane)
    a.valu("v_lshl_add_u32", t2, t2, 4, sT1)
    RV, MV = V(16, 16), V(32, 16)
    CL = V(48, 4)
    a.salu("s_and_b32", sT2, sW, 1)
    a.salu("s_lshl_b32", sT2, sT2, 7)
    a.salu("s_add_u32", sT2, sT2, K1_CB)
    a.valu("v_lshl_add_u32", vCA, t0, 2, sT2)
    a.valu("v_xor_b32", t3, 128, vCA)
    for s in range(4):
        a.dsr("ds_read_b32", CL[s], (vCA if s % 2 == 0 else t3), off=(s >> 1) * 256, tag="cl")
    for g in range(4):
        a.dsr("ds_read_b128", RV[4 * g:4 * g + 4], t2, off=32 * g, tag="st")
        a.dsr("ds_read_b128", MV[4 * g:4 * g + 4], t2, off=128 + 32 * g, tag="st")
    a.salu("s_sub_u32", sT1, sNT, 28)
    a.salu("s_lshl_b32", sT1, sT1, 1)
    a.salu("s_and_b32", sT2, sW, 1)
    a.salu("s_add_u32", sT1, sT1, sT2)
    a.salu("s_lshl_b32", sT1, sT1, 18)
    a.salu("s_lshl_b32", sT2, sN2, 6)
    a.salu("s_add_u32", sT1, sT1, sT2)
    a.salu("s_add_u32", sT1, sT1, WS_X1T)
    a.salu("s_xor_b32", sT2, sT1, 1 << 18)
    a.salu("s_add_u32", sT3, sT1, 4096)
    a.salu("s_add_u32", sT0, sT2, 4096)
    so = [sT1, sT2, sT3, sT0]
    a.valu("v_lshlrev_b32", vST, 13, t0)
    a.valu("v_lshrrev_b32", t1, 5, lane)
    a.valu("v_lshl_add_u32", vST, t1, 4, vST)
    a.wait(lg="all")
    PK = V(64, 32)
    for s in range(4):
        A_ = ACC[s]
        for r in range(16):
            a.valu("v_mul_f32", A_[r], A_[r], RV[r])
            a.valu("v_fma_f32", A_[r], -MV[r], CL[s], A_[r])
        pk = PK[8 * s:8 * s + 8]
        for i in range(8):
            a.valu("v_cvt_pk_bf16_f32", pk[i], A_[2 * i], A_[2 * i + 1])
        for q in range(2):
            a.valu("v_permlane32_swap_b32", pk[4 * q], pk[4 * q + 2])
            a.valu("v_permlane32_swap_b32", pk[4 * q + 1], pk[4 * q + 3])
            a.bstore("buffer_store_dwordx4", pk[4 * q:4 * q + 4], vST, rWS, so[s], off=q * 32)
    stamp(a, 13); a.wait(vm="all") if STAMP else None; stamp(a, 14); stamp(a, 15, real=True)
    stamp_flush(a, 16, rWS, sW, 0, t0, t1, sT0)
    a.label("K1_END")
    a.misc("s_endpgm")

C_F32 = 0; C_F64 = 6144; C_TW = 22528; C_ROWS = 40960; C_RS = 4160
K2_LDS = 163840

def gen_colfft(a, flags):
    sW, sG, sKD, sT0, sT1, sT2 = S(3), S(2), S(16), S(17), S(18), S(19)
    pWS, pDBG, pT = S(4, 2), S(6, 2), S(8, 2)
    rWS, rCT, rDBG = S(24, 4), S(28, 4), S(32, 4)
    lane = V(1)
    vL16, vXO, vWA, vT0, vT1, vT2, vT3 = V(2), V(3), [V(4), V(5), V(6), V(7)], V(8), V(9), V(10), V(11)
    vRA = [V(12), V(13)]; vOA = V(14); vO2 = V(15)
    XIN = lambda c, b, u: V(16 + 4 * (c * 4 + b * 2 + u), 4)
    WV = lambda b, g: V(48 + 4 * (b * 4 + g), 4)
    AR = [V(80, 16), V(96, 16)]; AI = [V(112, 16), V(128, 16)]
    P0, P1, P2 = V(144, 16), V(160, 16), V(176, 16)
    def F64(c, rb, ks):
        i = (c * 2 + rb) * 4 + ks
        return V(16 + 4 * i, 4) if c == 0 else V(192 + 4 * (i - 8), 4)
    TMP = V(224, 32)
    F32 = lambda c, u: TMP[4 * (c * 2 + u):4 * (c * 2 + u) + 4]
    TWr = lambda g: TMP[8 * g:8 * g + 4]
    TWi = lambda g: TMP[8 * g + 4:8 * g + 8]

    a.label("K2_COL")
    a.salu("s_cmp_ge_u32", None, sG, 29)
    a.branch("s_cbranch_scc1", "K2_END")
    a.sload("s_load_dwordx4", S(4, 4), S(0, 2), 64)
    pDBG, pWS = S(4, 2), S(6, 2)
    a.valu("v_and_b32", lane, 63, V(0))
    a.valu("v_lshrrev_b32", vT0, 6, V(0))
    a.valu("v_readfirstlane_b32", sW, vT0)
    a.valu("v_lshlrev_b32", vL16, 4, lane)
    getpc(a, pT, "TAB_C")
    srd(a, 28, pT, 40960)
    a.salu("s_lshl_b32", sKD, sG, 3)
    a.salu("s_add_u32", sKD, sKD, sW)
    a.salu("s_lshl_b32", sT0, sW, 10)
    for i in range(5):
        a.salu("s_mov_b32", M0, sT0)
        a.bload("buffer_load_dwordx4", None, vL16, rCT, sT0, lds=True, tag="ct")
        if i < 4: a.salu("s_add_u32", sT0, sT0, 8192)
    a.valu("v_and_b32", vT0, 31, lane)
    a.valu("v_lshlrev_b32", vXO, 6, vT0)
    a.valu("v_lshrrev_b32", vT1, 5, lane)
    a.valu("v_lshl_add_u32", vXO, vT1, 4, vXO)
    a.misc("s_waitcnt lgkmcnt(0)", "wait")
    srd(a, 24, pWS, WS_SIZE)
    srd(a, 32, pDBG, 256)
    a.salu("s_lshl_b32", sT0, sKD, 13)
    a.salu("s_add_u32", sT1, sT0, WS_X1T)
    a.salu("s_add_u32", sT2, sT1, 4096)
    for c in range(2):
        for b in range(2):
            for u in range(2):
                a.bload("buffer_load_dwordx4", XIN(c, b, u), vXO, rWS, (sT1, sT2)[c], off=b * 2048 + u * 32, tag="x")
    a.salu("s_add_u32", sT1, sT0, WS_WT)
    a.salu("s_add_u32", sT2, sT1, 4096)
    for b in range(2):
        for g in range(4):
            a.bload("buffer_load_dwordx4", WV(b, g), vL16, rWS, (sT1, sT2)[b], off=g * 1024, tag="w")
    a.salu("s_mul_i32", sT0, sW, C_RS)
    a.salu("s_add_u32", sT0, sT0, C_ROWS)
    a.valu("v_bfe_u32", vT2, lane, 1, 3)
    a.valu("v_xor_b32", vT2, vT2, vT1)
    a.valu("v_lshlrev_b32", vT2, 3, vT2)
    a.valu("v_lshl_add_u32", vT2, vT0, 6, vT2)
    a.valu("v_add_u32", vWA[0], sT0, vT2)
    for g in range(1, 4): a.valu("v_xor_b32", vWA[g], 16 * g, vWA[0])
    a.valu("v_bfe_u32", vT2, lane, 2, 2)
    a.valu("v_lshl_add_u32", vT3, vT1, 3, vT2)
    a.valu("v_lshlrev_b32", vRA[0], 6, vT3)
    a.valu("v_lshrrev_b32", vT3, 1, vT3)
    a.valu("v_bfe_u32", vT2, lane, 4, 1)
    a.valu("v_lshlrev_b32", vT2, 2, vT2)
    a.valu("v_and_b32", vT0, 3, lane)
    a.valu("v_add_u32", vT2, vT2, vT0)
    a.valu("v_xor_b32", vT3, vT3, vT2)
    a.valu("v_lshl_add_u32", vRA[0], vT3, 3, vRA[0])
    a.valu("v_add_u32", vRA[0], sT0, vRA[0])
    a.valu("v_xor_b32", vRA[1], 16, vRA[0])
    a.valu("v_add_u32", vRA[1], 256, vRA[1])
    a.valu("v_bfe_u32", vT0, lane, 2, 2)
    a.valu("v_lshl_add_u32", vT0, vT1, 3, vT0)
    a.valu("v_mul_u32_u24", vT0, C_RS, vT0)
    a.salu("s_and_b32", sT1, sW, 1)
    a.salu("s_lshl_b32", sT1, sT1, 2)
    a.valu("v_xor_b32", vT2, sT1, vT2)
    a.valu("v_lshl_add_u32", vT0, vT2, 3, vT0)
    a.salu("s_lshl_b32", sT1, sW, 9)
    a.salu("s_add_u32", sT1, sT1, C_ROWS)
    a.valu("v_add_u32", vOA, sT1, vT0)

    a.wait(vm="ct"); a.barrier()
    for c in range(3):
        for u in range(2):
            a.dsr("ds_read_b128", F32(c, u), vL16, off=C_F32 + (c * 2 + u) * 1024, tag="f32")
    for rb in range(2):
        for ks in range(4):
            a.dsr("ds_read_b128", F64(1, rb, ks), vL16, off=C_F64 + ((2 + rb) * 4 + ks) * 1024, tag="f64i")
    a.wait(vm="x", lg="f32")
    for b in range(2):
        for u in range(2):
            a.mfma(AR[b], XIN(0, b, u), F32(0, u), AR[b] if u else None)
            a.mfma(AI[b], XIN(0, b, u), F32(1, u), AI[b] if u else None)
        for u in range(2):
            a.mfma(AR[b], XIN(1, b, u), F32(2, u), AR[b])
            a.mfma(AI[b], XIN(1, b, u), F32(0, u), AI[b])
    a.wait(lg="all")

    def tw_reads(b, g):
        a.dsr("ds_read_b128", TWr(g), vL16, off=C_TW + ((b * 4 + g) * 2) * 1024, tag=f"tw{b}{g}")
        a.dsr("ds_read_b128", TWi(g), vL16, off=C_TW + ((b * 4 + g) * 2 + 1) * 1024, tag=f"tw{b}{g}")

    def twiddle(conj, sink, extra=None):
        for g in range(4): tw_reads(0, g)
        if extra: extra()
        for b in range(2):
            for g in range(4):
                a.wait(lg=f"tw{b}{g}")
                for e in range(4):
                    r = 4 * g + e
                    tr, ti = TWr(g)[e], TWi(g)[e]
                    a.valu("v_mul_f32", vT0, AR[b][r], ti)
                    a.valu("v_mul_f32", AR[b][r], AR[b][r], tr)
                    if not conj:
                        a.valu("v_fma_f32", AR[b][r], -AI[b][r], ti, AR[b][r])
                        a.valu("v_fma_f32", AI[b][r], AI[b][r], tr, vT0)
                    else:
                        a.valu("v_fma_f32", AR[b][r], AI[b][r], ti, AR[b][r])
                        a.valu("v_fma_f32", AI[b][r], AI[b][r], tr, -vT0)
                if b == 0: tw_reads(1, g)
                sink(b, g)

    def pack3(negsrc):
        def sink(b, g):
            for j in range(2):
                i = 8 * b + 2 * g + j; r = 4 * g + 2 * j
                a.valu("v_cvt_pk_bf16_f32", P0[i], AR[b][r], AR[b][r + 1])
                a.valu("v_cvt_pk_bf16_f32", P1[i], AI[b][r], AI[b][r + 1])
                N = negsrc[b]
                a.valu("v_cvt_pk_bf16_f32", P2[i], -N[r], -N[r + 1])
        return sink

    def f64lo():
        for rb in range(2):
            for ks in range(4):
                if rb * 4 + ks < 7:
                    a.dsr("ds_read_b128", F64(0, rb, ks), vL16, off=C_F64 + (rb * 4 + ks) * 1024, tag="f64r")
    twiddle(False, pack3(AI), extra=f64lo)
    a.dsr("ds_read_b128", F64(0, 1, 3), vL16, off=C_F64 + 7 * 1024, tag="f64r")
    a.wait(lg="all")
    PK = lambda P, ks: P[4 * ks:4 * ks + 4]
    for rb in range(2):
        for ks in range(4):
            a.mfma(AR[rb], F64(0, rb, ks), PK(P0, ks), AR[rb] if ks else None)
            a.mfma(AI[rb], F64(1, rb, ks), PK(P0, ks), AI[rb] if ks else None)
            a.mfma(AR[rb], F64(1, rb, ks), PK(P2, ks), AR[rb])
            a.mfma(AI[rb], F64(0, rb, ks), PK(P1, ks), AI[rb])
    a.wait(vm="w")
    sinkZ = pack3(AR)
    for b in range(2):
        for g in range(4):
            for e in range(4):
                r = 4 * g + e
                wr_, wi_ = WV(b, g)[e >> 1], WV(b, g)[2 + (e >> 1)]
                if e & 1:
                    a.valu("v_and_b32", vT1, 0xffff0000, wr_); a.valu("v_and_b32", vT2, 0xffff0000, wi_)
                else:
                    a.valu("v_lshlrev_b32", vT1, 16, wr_); a.valu("v_lshlrev_b32", vT2, 16, wi_)
                a.valu("v_mul_f32", vT0, AR[b][r], vT2)
                a.valu("v_mul_f32", AR[b][r], AR[b][r], vT1)
                a.valu("v_fma_f32", AR[b][r], -AI[b][r], vT2, AR[b][r])
                a.valu("v_fma_f32", AI[b][r], AI[b][r], vT1, vT0)
        for g in range(4): sinkZ(b, g)
    for rb in range(2):
        for ks in range(4):
            a.mfma(AR[rb], F64(0, rb, ks), PK(P0, ks), AR[rb] if ks else None)
            a.mfma(AI[rb], F64(0, rb, ks), PK(P1, ks), AI[rb] if ks else None)
            a.mfma(AR[rb], F64(1, rb, ks), PK(P1, ks), AR[rb])
            a.mfma(AI[rb], F64(1, rb, ks), PK(P2, ks), AI[rb])
    def sinkL(b, g):
        for (P, A_, c) in ((P0, AR, 0), (P1, AI, 1)):
            i = 8 * b + 2 * g
            a.valu("v_cvt_pk_bf16_f32", P[i], A_[b][4 * g], A_[b][4 * g + 1])
            a.valu("v_cvt_pk_bf16_f32", P[i + 1], A_[b][4 * g + 2], A_[b][4 * g + 3])
            a.dsw("ds_write_b64", vWA[g], P[i:i + 2], off=c * 8 * C_RS + b * 2048)
    twiddle(True, sinkL)
    a.wait(lg="all")
    BO = lambda c, cb, u: V(16 + 4 * (c * 4 + cb * 2 + u), 4)
    for c in range(3):
        for u in range(2):
            a.dsr("ds_read_b128", F32(c, u), vL16, off=C_F32 + (c * 2 + u) * 1024, tag="f32")
    for cb in range(2):
        for c in range(2):
            for u in range(2):
                for q in range(2):
                    a.dsr("ds_read_b64_tr_b16", BO(c, cb, u)[2 * q:2 * q + 2], vRA[q], off=c * 8 * C_RS + cb * 2048 + u * 1024, tag=f"bo{cb}")
        a.wait(lg=f"bo{cb}")
    for cb in range(2):
        for u in range(2):
            a.mfma(AR[cb], F32(0, u), BO(0, cb, u), AR[cb] if u else None)
            a.mfma(AI[cb], F32(0, u), BO(1, cb, u), AI[cb] if u else None)
        for u in range(2):
            a.mfma(AR[cb], F32(1, u), BO(1, cb, u), AR[cb])
            a.mfma(AI[cb], F32(2, u), BO(0, cb, u), AI[cb])
    for b in range(2):
        for g in range(4): sinkL(b, g)
    a.wait(lg="all"); a.barrier()
    OUT = lambda j: V(16 + 4 * j, 4)
    a.salu("s_lshl_b32", sT0, sG, 16)
    a.salu("s_lshl_b32", sT1, sW, 13)
    a.salu("s_add_u32", sT0, sT0, sT1)
    a.salu("s_add_u32", sT0, sT0, WS_YF)
    a.salu("s_add_u32", sT1, sT0, 4096)
    for j in range(8):
        if j % 2 == 0:
            a.valu("v_xor_b32", vO2, (j >> 1) * 8, vOA)
        for q in range(2):
            a.dsr("ds_read_b64_tr_b16", OUT(j)[2 * q:2 * q + 2], vO2, off=q * 4 * C_RS + j * 64, tag=f"o{j}")
        if j >= 3:
            a.wait(lg=f"o{j - 3}")
            a.bstore("buffer_store_dwordx4", OUT(j - 3), vL16, rWS, (sT0, sT1)[(j - 3) >> 2], off=((j - 3) & 3) * 1024, mods="sc1")
    for j in range(5, 8):
        a.wait(lg=f"o{j}")
        a.bstore("buffer_store_dwordx4", OUT(j), vL16, rWS, sT1, off=(j & 3) * 1024, mods="sc1")
    if flags:
        a.wait(vm="all"); a.barrier()
        a.salu("s_cmp_lg_u32", None, sW, 0)
        a.branch("s_cbranch_scc1", "K2_END")
        a.salu("s_lshl_b32", sT0, sG, 2)
        a.valu("v_mov_b32", vT0, sT0)
        a.valu("v_mov_b32", vT1, 1)
        a.salu("s_mov_b64", EXEC, 1)
        a.bstore("buffer_store_dword", vT1, vT0, rDBG, 0, mods="sc1")
    a.misc("s_endpgm")


def gen_gemm2(a, flags, idbase):
    sW, sMT, sNT, sT0, sT1, sT2, sT3, sSO, sM0, sH0, sH1 = S(3), S(16), S(17), S(18), S(19), S(20), S(21), S(22), S(23), S(56), S(57)
    pX, pT, pWD, pOUT, pDBG, pWS = S(4, 2), S(6, 2), S(8, 2), S(10, 2), S(12, 2), S(14, 2)
    rX, rWD, rOUT, rDBG, rWS, rTI, rYF = S(24, 4), S(28, 4), S(32, 4), S(36, 4), S(40, 4), S(44, 4), S(48, 4)
    sCNT = S(58)
    lane, vW, vL16 = V(1), V(2), V(3)
    aT = [V(4), V(5)]
    t0, t1, t2, t3, vXO, vFL, vFV = V(6), V(7), V(8), V(9), V(10), V(11), V(12)
    HF = lambda i, sb: V(16 + 4 * (2 * i + sb), 4)
    ACC = lambda db, sb: V(128 + 16 * (2 * db + sb), 16)
    AF = lambda buf, db: V(192 + 4 * (2 * buf + db), 4)
    TI = lambda j, db: V(208 + 4 * (2 * j + db), 4)
    XV = V(240, 4)
    YF = lambda j, sb: V(16 + 4 * (2 * j + sb), 4)

    a.label("K2_GEMM")
    a.sload("s_load_dwordx2", pX, S(0, 2), 0)
    a.sload("s_load_dwordx8", S(8, 8), S(0, 2), 48)
    a.valu("v_and_b32", lane, 63, V(0))
    a.valu("v_lshrrev_b32", t0, 6, V(0))
    a.valu("v_readfirstlane_b32", sW, t0)
    a.valu("v_lshlrev_b32", vL16, 4, lane)
    a.salu("s_sub_u32", sT0, S(2), idbase)
    a.salu("s_and_b32", sT1, sT0, 7)
    a.salu("s_lshr_b32", sT0, sT0, 3)
    a.salu("s_lshl_b32", sMT, sT1, 2)
    a.salu("s_and_b32", sT2, sT0, 3)
    a.salu("s_add_u32", sMT, sMT, sT2)
    a.salu("s_lshr_b32", sNT, sT0, 2)
    a.valu("v_lshrrev_b32", t0, 3, lane)
    a.valu("v_mul_u32_u24", t1, 896, t0)
    a.valu("v_and_b32", t2, 7, lane)
    a.valu("v_lshlrev_b32", t0, 1, t0)
    a.valu("v_and_b32", t0, 4, t0)
    a.valu("v_xor_b32", t2, t2, t0)
    a.valu("v_lshl_add_u32", t1, t2, 4, t1)
    a.salu("s_lshl_b32", sT0, sNT, 7)
    a.valu("v_add_u32", vW, sT0, t1)
    getpc(a, pT, "TAB_I")
    srd(a, 44, pT, 29 * 14 * 1024)
    a.salu("s_mul_i32", sSO, sW, 224 * 896)
    a.salu("s_mul_i32", sM0, sW, 20480)
    a.salu("s_mul_i32", sH0, sMT, 224)
    a.salu("s_mul_i32", sT0, sW, 14)
    a.salu("s_add_u32", sH0, sH0, sT0)
    a.salu("s_lshl_b32", sH0, sH0, 10)
    a.salu("s_add_u32", sH1, sH0, 112 * 1024)
    a.misc("s_waitcnt lgkmcnt(0)", "wait")
    srd(a, 28, pWD, 1792 * 896)
    srd(a, 40, pWS, WS_SIZE)
    srd(a, 24, pX, 2048 * 896)
    srd(a, 32, pOUT, 2048 * 896)
    srd(a, 36, pDBG, 256)
    srd(a, 48, pWS, 29 * 65536, add=WS_YF)

    def wload(i):
        slot = i % 10
        for half in range(2):
            a.salu("s_add_u32", sT0, sM0, slot * 2048 + half * 1024)
            a.salu("s_mov_b32", M0, sT0)
            a.salu("s_add_u32", sT1, sSO, (16 * i + 8 * half) * 896)
            a.bload("buffer_load_dwordx4", None, vW, rWD, sT1, lds=True, tag=f"w{i}")
    def hload(i):
        if i and i % 4 == 0:
            a.salu("s_add_u32", sH0, sH0, 4096)
            a.salu("s_add_u32", sH1, sH1, 4096)
        for sb in range(2):
            a.bload("buffer_load_dwordx4", HF(i, sb), vL16, rWS, (sH0, sH1)[sb], off=(i % 4) * 1024, tag=f"h{i}")
    for i in range(14):
        if i < 10: wload(i)
        hload(i)
    a.salu("s_mul_i32", sT0, sW, 14)
    a.salu("s_lshl_b32", sT1, sNT, 1)
    a.salu("s_add_u32", sT0, sT0, sT1)
    a.salu("s_lshl_b32", sT0, sT0, 10)
    for j in range(4):
        for db in range(2):
            a.bload("buffer_load_dwordx4", TI(j, db), vL16, rTI, sT0, off=db * 1024, tag="ti")
        if j < 3: a.salu("s_add_u32", sT0, sT0, 8 * 14 * 1024)
    a.valu("v_and_b32", t0, 31, lane)
    a.valu("v_mul_u32_u24", t0, 57344, t0)
    a.salu("s_lshl_b32", sT0, sMT, 1)
    a.salu("s_bfe_u32", sT1, sW, (1 << 16) | 1)
    a.salu("s_add_u32", sT0, sT0, sT1)
    a.salu("s_mul_i32", sT0, sT0, 896)
    a.salu("s_lshl_b32", sT1, sNT, 7)
    a.salu("s_add_u32", sT0, sT0, sT1)
    a.salu("s_lshr_b32", sT1, sW, 2)
    a.salu("s_lshl_b32", sT1, sT1, 6)
    a.salu("s_add_u32", sT0, sT0, sT1)
    a.salu("s_and_b32", sT1, sW, 1)
    a.salu("s_lshl_b32", sT1, sT1, 5)
    a.salu("s_add_u32", sT0, sT0, sT1)
    a.valu("v_add_u32", vXO, sT0, t0)
    a.valu("v_lshrrev_b32", t1, 5, lane)
    a.valu("v_lshl_add_u32", t0, t1, 3, vXO)
    a.bload("buffer_load_dwordx2", XV[0:2], t0, rX, 0, tag="xv")
    a.bload("buffer_load_dwordx2", XV[2:4], t0, rX, 0, off=16, tag="xv")
    a.valu("v_lshl_add_u32", vXO, t1, 4, vXO)
    a.valu("v_lshrrev_b32", t0, 5, lane)
    a.valu("v_bfe_u32", t1, lane, 2, 2)
    a.valu("v_lshl_add_u32", t0, t0, 3, t1)
    a.valu("v_lshlrev_b32", t0, 7, t0)
    a.valu("v_bfe_u32", t2, lane, 4, 1)
    a.valu("v_lshlrev_b32", t2, 5, t2)
    a.valu("v_and_b32", t3, 3, lane)
    a.valu("v_lshl_add_u32", t2, t3, 3, t2)
    a.valu("v_lshrrev_b32", t1, 1, t1)
    a.valu("v_lshl_add_u32", t2, t1, 6, t2)
    a.valu("v_add_u32", t0, t0, t2)
    a.valu("v_add_u32", aT[0], sM0, t0)
    a.valu("v_xor_b32", aT[1], 64, aT[0])
    a.valu("v_and_b32", t0, 3, lane)
    a.valu("v_lshl_add_u32", t0, t0, 3, sW)
    a.valu("v_min_u32", t0, 28, t0)
    a.valu("v_lshlrev_b32", vFL, 2, t0)

    def reads(i):
        slot = i % 10
        for db in range(2):
            for q in range(2):
                a.dsr("ds_read_b64_tr_b16", AF(i & 1, db)[2 * q:2 * q + 2], aT[db], off=slot * 2048 + q * 512, tag=f"r{i}")
    a.wait(vm="w0"); reads(0)
    for i in range(14):
        if i + 1 < 14:
            a.wait(vm=f"w{i + 1}"); reads(i + 1)
        a.wait(vm=f"h{i}", lg=f"r{i}")
        for db in range(2):
            for sb in range(2):
                a.mfma(ACC(db, sb), AF(i & 1, db), HF(i, sb), ACC(db, sb) if i else None)
        if i < 4: wload(10 + i)
    if flags:
        a.salu("s_mov_b32", sCNT, 0)
        a.label("K2_POLL", keep=True)
        a.bload("buffer_load_dword", vFV, vFL, rDBG, 0, mods="sc1")
        a.wait(vm="all")
        a.valu("v_cmp_eq_u32", VCC, 0, vFV)
        a.branch("s_cbranch_vccz", "K2_GO")
        a.salu("s_add_u32", sCNT, sCNT, 1)
        a.salu("s_cmp_ge_u32", None, sCNT, 200000)
        a.branch("s_cbranch_scc1", "K2_GO")
        a.misc("s_sleep 4")
        a.branch("s_branch", "K2_POLL")
        a.label("K2_GO", keep=True)
    a.salu("s_lshl_b32", sT0, sW, 6)
    a.salu("s_lshl_b32", sT1, sMT, 1)
    a.salu("s_add_u32", sT0, sT0, sT1)
    a.salu("s_lshl_b32", sT0, sT0, 10)
    for j in range(4):
        for sb in range(2):
            a.bload("buffer_load_dwordx4", YF(j, sb), vL16, rYF, sT0, off=sb * 1024, mods="sc1", tag=f"y{j}")
        if j < 3: a.salu("s_add_u32", sT0, sT0, 8 * 65536)
    for j in range(4):
        a.wait(vm=f"y{j}")
        for db in range(2):
            for sb in range(2):
                a.mfma(ACC(db, sb), TI(j, db), YF(j, sb), ACC(db, sb))
    a.valu("v_add_u32", t0, sM0, vL16)
    for db in range(2):
        for sb in range(2):
            for g in range(4):
                a.dsw("ds_write_b128", t0, ACC(db, sb)[4 * g:4 * g + 4], off=((2 * db + sb) * 4 + g) * 1024)
    a.wait(lg="all"); a.barrier()
    a.salu("s_lshl_b32", sT0, sW, 11)
    a.valu("v_add_u32", t0, sT0, vL16)
    a.valu("v_add_u32", t1, 61440, t0)
    a.valu("v_add_u32", t2, 122880, t0)
    RD = lambda k, u: V(16 + 8 * k + 4 * u, 4)
    for k in range(8):
        ad, o = ((t0, k) if k < 3 else ((t1, k - 3) if k < 6 else (t2, k - 6)))
        for u in range(2):
            a.dsr("ds_read_b128", RD(k, u), ad, off=o * 20480 + u * 1024, tag=f"rd{k}")
        if k == 6: a.wait(lg="rd1")
    SUM = V(96, 8)
    for e in range(4):
        pass
    a.wait(vm="xv")
    for u in range(2):
        for e in range(4):
            src = XV[2 * u + (e >> 1)]
            if e & 1: a.valu("v_and_b32", SUM[4 * u + e], 0xffff0000, src)
            else: a.valu("v_lshlrev_b32", SUM[4 * u + e], 16, src)
    for k in range(8):
        a.wait(lg=f"rd{k}")
        for u in range(2):
            for e in range(4):
                a.valu("v_add_f32", SUM[4 * u + e], SUM[4 * u + e], RD(k, u)[e])
    PK = V(104, 4)
    for i in range(4):
        a.valu("v_cvt_pk_bf16_f32", PK[i], SUM[2 * i], SUM[2 * i + 1])
    a.valu("v_permlane32_swap_b32", PK[0], PK[2])
    a.valu("v_permlane32_swap_b32", PK[1], PK[3])
    a.bstore("buffer_store_dwordx4", PK, vXO, rOUT, 0)
    a.misc("s_endpgm")

def hexdump(arr_u16):
    a32 = np.asarray(arr_u16, dtype=np.uint16).view(np.uint64)
    lines = []
    for i in range(0, len(a32), 8):
        lines.append(".quad " + ",".join("0x%x" % int(v) for v in a32[i:i + 8]))
    return "\n".join(lines)

def bfarr(x):
    u = np.asarray(x, dtype=np.float32).view(np.uint32).astype(np.uint64)
    return (((u + 0x7FFF + ((u >> 16) & 1)) >> 16) & 0xFFFF).astype(np.uint16)

def clean(x):
    x = np.asarray(x, dtype=np.float64).copy(); x[np.abs(x) < 1e-12] = 0.0
    return x + 0.0

SC = 2.0 / (448 * 2048)
def tab_c():
    lane = np.arange(64); i = lane & 31; h = lane >> 5; e = np.arange(8)
    out = []
    for c in range(3):
        for u in range(2):
            k = 16 * u + 8 * h[:, None] + e[None, :]
            ang = 2 * np.pi * ((i[:, None] * k) % 32) / 32
            v = (np.cos(ang), -np.sin(ang), np.sin(ang))[c]
            out.append(bfarr(clean(v)).ravel())
    for c in range(2):
        for rb in range(2):
            for ks in range(4):
                b, u = ks >> 1, ks & 1
                k = 32 * b + 16 * u + (e[None, :] & 3) + 8 * (e[None, :] >> 2) + 4 * h[:, None]
                ang = 2 * np.pi * (((32 * rb + i[:, None]) * k) % 64) / 64
                v = (np.cos(ang), -np.sin(ang))[c]
                out.append(bfarr(clean(v)).ravel())
    e4 = np.arange(4)
    for b in range(2):
        for g in range(4):
            n2 = 32 * b + 8 * g + 4 * h[:, None] + e4[None, :]
            ang = 2 * np.pi * (n2 * i[:, None]) / 2048
            for c in range(2):
                v = (np.cos(ang), -np.sin(ang))[c]
                out.append(clean(v).astype(np.float32).ravel().view(np.uint16))
    out.append(np.zeros(1024, dtype=np.uint16))
    r = np.concatenate(out)
    assert r.size * 2 == 40960, r.size
    return r

def tab_i_block(g):
    lane = np.arange(64); i = lane & 31; h = lane >> 5; e = np.arange(8)
    out = []
    for db in range(14):
        d = 32 * db + i[:, None]; kd = 8 * g + e[None, :]
        ang = 2 * np.pi * ((d * kd) % 448) / 448
        sc = np.where((kd == 0) | (kd == 224), SC / 2, np.where(kd > 224, 0.0, SC))
        v = np.where(h[:, None] == 0, clean(np.cos(ang)), clean(-np.sin(ang))) * sc
        out.append(bfarr(v + 0.0).ravel())
    return np.concatenate(out)

def gen_tables():
    L = ['.section .rodata,"a"', ".p2align 12"]
    idx = np.arange(448); ang = 2 * np.pi * idx / 448
    co, ns = clean(np.cos(ang)), clean(-np.sin(ang))
    for nm, arr in (("c", co), ("n", ns), ("C", co * SC), ("N", ns * SC)):
        b = bfarr(arr + 0.0)
        for k in range(448): L.append(f".set z{nm}{k},{int(b[k])}")
    L.append(".altmacro")
    L.append(""".macro e4 p,a,b,c,d
.short z\\p\\()\\a,z\\p\\()\\b,z\\p\\()\\c,z\\p\\()\\d
.endm
.macro frow p,d,k0,n
.set zk,\\k0
.rept \\n
e4 \\p,%((\\d*zk)%448),%((\\d*(zk+1))%448),%((\\d*(zk+2))%448),%((\\d*(zk+3))%448)
.set zk,zk+4
.endr
.endm
.macro e1 p,a
.short z\\p\\()\\a
.endm
.macro ftile p,k0
.set zd,0
.rept 448
frow \\p,%zd,\\k0,16
.set zd,zd+1
.endr
.endm
.macro ftile3 p
.set zd,0
.rept 448
frow \\p,%zd,192,8
e1 \\p,%((zd*224)%448)
.fill 31,2,0
.set zd,zd+1
.endr
.endm
.macro iblk g
.set zb,0
.rept 14
.set zd,zb
.rept 32
frow C,%zd,%(8*\\g),2
.set zd,zd+1
.endr
.set zd,zb
.rept 32
frow N,%zd,%(8*\\g),2
.set zd,zd+1
.endr
.set zb,zb+32
.endr
.endm""")
    L.append("TAB_F:")
    for j in range(3):
        L.append(f"ftile c,{64 * j}"); L.append(f"ftile n,{64 * j}")
    L.append("ftile3 c"); L.append("ftile3 n")
    L.append("TAB_I:")
    L.append(hexdump(tab_i_block(0)))
    for g in range(1, 28): L.append(f"iblk {g}")
    L.append(hexdump(tab_i_block(28)))
    L.append(".noaltmacro")
    L.append("TAB_C:")
    L.append(hexdump(tab_c()))
    return "\n".join(L) + "\n"

def kd(name, nv, ns):
    return f""".p2align 6
.amdhsa_kernel {name}
  .amdhsa_next_free_vgpr {nv}
  .amdhsa_next_free_sgpr {ns}
  .amdhsa_accum_offset {(nv + 3) // 4 * 4}
  .amdhsa_group_segment_fixed_size 0
  .amdhsa_kernarg_size 80
  .amdhsa_user_sgpr_count 2
  .amdhsa_user_sgpr_kernarg_segment_ptr 1
  .amdhsa_system_sgpr_workgroup_id_x 1
  .amdhsa_float_denorm_mode_32 3
.end_amdhsa_kernel
"""

def build(mode="fused"):
    a = Asm()
    head = open("cdna_kernels/" + NAME + ".s.ref").read().split("; Override launch")[0]
    launches = [f"; @launch kernel=k1_kernel grid=(256,1,1) block=(512,1,1) lds={K1_LDS}"]
    gen_k1(a)
    kds = kd("k1_kernel", 240, 102)
    if mode == "fused":
        launches.append(f"; @launch kernel=k2_kernel grid=(256,1,1) block=(512,1,1) lds={K2_LDS}")
        a2 = Asm(); a2.nlabel = 1000
        a2.raw(".p2align 8\nk2_kernel:")
        a2.salu("s_cmp_ge_u32", None, S(2), 256)
        a2.branch("s_cbranch_scc1", "K2_END")
        a2.salu("s_cmp_lt_u32", None, S(2), 32)
        a2.branch("s_cbranch_scc1", "K2_COL")
        gen_gemm2(a2, True, 32)
        a2.vm, a2.lg = [], []
        gen_colfft(a2, True)
        a2.label("K2_END"); a2.misc("s_endpgm")
        body2 = a2.text()
        kds += kd("k2_kernel", 256, 102)
    else:
        launches.append(f"; @launch kernel=k2a_kernel grid=(29,1,1) block=(512,1,1) lds={K2_LDS}")
        launches.append(f"; @launch kernel=k2b_kernel grid=(224,1,1) block=(512,1,1) lds={K2_LDS}")
        a2 = Asm(); a2.nlabel = 1000
        a2.raw(".p2align 8\nk2a_kernel:")
        gen_colfft(a2, False)
        a2.label("K2_END"); a2.misc("s_endpgm")
        a2.vm, a2.lg = [], []
        a2.raw(".p2align 8\nk2b_kernel:")
        a2.salu("s_cmp_ge_u32", None, S(2), 224)
        a2.branch("s_cbranch_scc1", "K2_END")
        gen_gemm2(a2, False, 0)
        body2 = a2.text()
        kds += kd("k2a_kernel", 256, 102) + kd("k2b_kernel", 256, 102)
    txt = head + "\n".join(launches) + "\n" + '.amdgcn_target "amdgcn-amd-amdhsa--gfx950"\n.text\n' + a.text() + body2
    txt += '.section .rodata,"a"\n' + kds + gen_tables()
    return txt

if __name__ == "__main__":
    if "--stamp" in sys.argv:
        STAMP = True; sys.argv.remove("--stamp")
    mode = sys.argv[1] if len(sys.argv) > 1 else "fused"
    out = sys.argv[2] if len(sys.argv) > 2 else "cdna_kernels/" + NAME + ".s"
    open(out, "w").write(build(mode))
    print("wrote", out)
```
